```python
import torch

def _softmax(x, axis=-1):
    return torch.softmax(x, dim=axis)
def _gelu(x):
    return torch.nn.functional.gelu(x, approximate="tanh")
def _silu(x):
    return torch.nn.functional.silu(x)
def _sigmoid(x):
    return torch.sigmoid(x)
def _layernorm(x, axis=-1, eps=1e-5):
    m = x.mean(dim=axis, keepdim=True)
    v = x.var(dim=axis, keepdim=True, unbiased=False)
    return (x - m) / torch.sqrt(v + eps)
def _scatter_add(tgt, idx, src, axis=0):
    return tgt.clone().index_add_(axis, idx, src)
def _segment_sum(src, seg, n):
    out = torch.zeros((n,) + src.shape[1:], dtype=src.dtype)
    return out.index_add_(0, seg, src)
def _pad(x, pw):
    flat = tuple(v for pair in reversed(pw) for v in pair)
    return torch.nn.functional.pad(x, flat)

kernel_name = 'sequential_preLN__gqa_block_cached__mixer_token_mlp__decode'

def setup_inputs():

    _w = (lambda a: (lambda t: t.to(torch.bfloat16) if t.is_floating_point() else t)(torch.as_tensor(a)))
    def _A_setup():
        B, Sq, D = 8, 1, 512
        Hq, Hkv, Sk, Dh = 32, 8, 8192, 128
        assert Hq % Hkv == 0, (Hq, Hkv)
        return {
            "x": _w((lambda *s: torch.randn(*s, dtype=torch.bfloat16) * 0.05)(B, Sq, D)),
            "k_cache": _w((lambda *s: torch.randn(*s, dtype=torch.bfloat16) * 1.6)(B, Hkv, Sk, Dh)),
            "v_cache": _w((lambda *s: torch.randn(*s, dtype=torch.bfloat16) * 0.8)(B, Hkv, Sk, Dh)),
            "wq": _w((lambda *s: torch.randn(*s, dtype=torch.bfloat16) * 1.6)(D, Hq * Dh) * (D ** -0.5)),
            "wo": _w((lambda *s: torch.randn(*s, dtype=torch.bfloat16) * 0.8)(Hq * Dh, D) * ((Hq * Dh) ** -0.5)),
        }
    _A_in = _A_setup()

    def _B_setup():
        B, S, D, F = 8, 1, 512, 1792
        return {
            "x": _w((lambda *s: torch.randn(*s, dtype=torch.bfloat16) * 0.05)(B, S, D)),
            "w1": _w((lambda *s: torch.randn(*s, dtype=torch.bfloat16) * 1.6)(S, F) * (S ** -0.5)),
            "b1": _w((lambda *s: torch.randn(*s, dtype=torch.bfloat16) * 1.6)(F) * 0.02),
            "w2": _w((lambda *s: torch.randn(*s, dtype=torch.bfloat16) * 1.6)(F, S) * (F ** -0.5)),
            "b2": _w((lambda *s: torch.randn(*s, dtype=torch.bfloat16) * 0.8)(S) * 0.02),
        }
    _B_in = _B_setup()

    return {
        "A_x": _A_in["x"],
        "A_k_cache": _A_in["k_cache"],
        "A_v_cache": _A_in["v_cache"],
        "A_wq": _A_in["wq"],
        "A_wo": _A_in["wo"],
        "B_x": _B_in["x"],
        "B_w1": _B_in["w1"],
        "B_b1": _B_in["b1"],
        "B_w2": _B_in["w2"],
        "B_b2": _B_in["b2"],
    }

def reference(A_x, A_k_cache, A_v_cache, A_wq, A_wo, B_x, B_w1, B_b1, B_w2, B_b2):
    def _A_ref(x, k_cache, v_cache, wq, wo):
        B, Sq, D = x.shape
        Hq, Dh = 32, 128
        Hkv = k_cache.shape[1]
        rep = Hq // Hkv
        q = (lambda x, *d: x.permute(*d))((x @ wq).reshape(B, Sq, Hq, Dh), 0, 2, 1, 3)
        k = (lambda x, n, axis: torch.repeat_interleave(x, n, dim=axis))(k_cache, rep, axis=1)
        v = (lambda x, n, axis: torch.repeat_interleave(x, n, dim=axis))(v_cache, rep, axis=1)
        scores = torch.einsum("bhqd,bhkd->bhqk", q, k) * (Dh ** -0.5)
        p = _softmax(scores, axis=-1)
        o = torch.einsum("bhqk,bhkd->bhqd", p, v)
        return (lambda x, *d: x.permute(*d))(o, 0, 2, 1, 3).reshape(B, Sq, Hq * Dh) @ wo

    def _B_ref(x, w1, b1, w2, b2):
        B, S, D = x.shape
        h = _layernorm(x, axis=-1)
        u = torch.einsum("bsd,sf->bdf", h, w1) + b1
        u = _gelu(u)
        y = torch.einsum("bdf,fs->bds", u, w2) + b2
        return (lambda x, *d: x.permute(*d))(y, 0, 2, 1)

    x = A_x
    h = x + _A_ref(_layernorm(x, axis=-1), A_k_cache, A_v_cache, A_wq, A_wo)
    h2 = h + _B_ref(_layernorm(h, axis=-1), B_w1, B_b1, B_w2, B_b2)
    return h2
```

```python
import sys

NAME = "sequential_preLN__gqa_block_cached__mixer_token_mlp__decode"

HEADER = """; Kernarg layout for this problem (104 bytes, ptrs only, base s[0:1]):
"""

WS_Q = 0x0
WS_PO = 0x100000
WS_PML = 0x200000
WS_YP = 0x300000
WS_BYTES = 0x400000

SCALE = "0x3db504f3"
LOG2E = "0x3fb8aa3b"
NLOG2E = "0xbfb8aa3b"


class Asm:
    def __init__(self):
        self.lines = []

    def __call__(self, s):
        for l in s.strip("\n").split("\n"):
            self.lines.append("    " + l.strip())

    def label(self, s):
        self.lines.append(s + ":")

    def raw(self, s):
        self.lines.append(s)

    def text(self):
        return "\n".join(self.lines) + "\n"


def vr(a, n=1):
    return f"v{a}" if n == 1 else f"v[{a}:{a+n-1}]"


def sr(a, n=1):
    return f"s{a}" if n == 1 else f"s[{a}:{a+n-1}]"


def srd(A, d, base, nbytes):
    A(f"""s_mov_b32 s{d}, s{base}
    s_and_b32 s{d+1}, s{base+1}, 0xffff
    s_mov_b32 s{d+2}, {nbytes}
    s_mov_b32 s{d+3}, 0x00020000""")


def allreduce(A, v, t, op="add"):
    ins = f"v_{op}_f32"
    A(f"""s_nop 1
    {ins}_dpp v{v}, v{v}, v{v} quad_perm:[1,0,3,2] row_mask:0xf bank_mask:0xf
    s_nop 1
    {ins}_dpp v{v}, v{v}, v{v} quad_perm:[2,3,0,1] row_mask:0xf bank_mask:0xf
    s_nop 1
    {ins}_dpp v{v}, v{v}, v{v} row_half_mirror row_mask:0xf bank_mask:0xf
    s_nop 1
    {ins}_dpp v{v}, v{v}, v{v} row_mirror row_mask:0xf bank_mask:0xf""")
    reduce_rows(A, v, t, op)


def reduce_rows(A, v, t, op):
    ins = f"v_{op}_f32"
    A(f"""v_mov_b32 v{t}, v{v}
    s_nop 1
    v_permlane16_swap_b32 v{v}, v{t}
    s_nop 0
    {ins} v{v}, v{v}, v{t}
    v_mov_b32 v{t}, v{v}
    s_nop 1
    v_permlane32_swap_b32 v{v}, v{t}
    s_nop 0
    {ins} v{v}, v{v}, v{t}""")


def bf16r1(A, v):
    A(f"""v_cvt_pk_bf16_f32 v{v}, v{v}, v{v}
    v_lshlrev_b32 v{v}, 16, v{v}""")


def bf16r2(A, a, b, t):
    A(f"""v_cvt_pk_bf16_f32 v{t}, v{a}, v{b}
    v_lshlrev_b32 v{a}, 16, v{t}
    v_and_b32 v{b}, 0xffff0000, v{t}""")


def layernorm8(A, x, t0, t1, t2):
    A(f"v_add_f32 v{t0}, v{x}, v{x+1}")
    for i in range(2, 8):
        A(f"v_add_f32 v{t0}, v{t0}, v{x+i}")
    allreduce(A, t0, t1)
    A(f"v_mul_f32 v{t0}, 0x3b000000, v{t0}")
    A(f"v_sub_f32 v{t1}, v{x}, v{t0}")
    A(f"v_mul_f32 v{t2}, v{t1}, v{t1}")
    for i in range(1, 8):
        A(f"v_sub_f32 v{t1}, v{x+i}, v{t0}")
        A(f"v_fmac_f32 v{t2}, v{t1}, v{t1}")
    allreduce(A, t2, t1)
    A(f"v_mul_f32 v{t2}, 0x3b000000, v{t2}")
    bf16r2(A, t0, t2, t1)
    A(f"v_add_f32 v{t2}, 0x3727c5ac, v{t2}")
    bf16r1(A, t2)
    A(f"v_sqrt_f32 v{t2}, v{t2}")
    A("s_nop 0")
    bf16r1(A, t2)
    A(f"v_rcp_f32 v{t2}, v{t2}")
    for i in range(8):
        A(f"v_sub_f32 v{x+i}, v{x+i}, v{t0}")
    for i in range(0, 8, 2):
        bf16r2(A, x + i, x + i + 1, t1)
    for i in range(8):
        A(f"v_mul_f32 v{x+i}, v{x+i}, v{t2}")
    for i in range(0, 8, 2):
        bf16r2(A, x + i, x + i + 1, t1)


def unpack8(A, src, dst):
    for i in range(4):
        A(f"v_lshlrev_b32 v{dst+2*i}, 16, v{src+i}")
        A(f"v_and_b32 v{dst+2*i+1}, 0xffff0000, v{src+i}")


def gemv128(A, ntile, srdw, voff, sbase, rowstride, bf_addr, R, nbuf, T, acc, bfr, s_lo, s_hi, s_tmp):
    A(f"s_mov_b32 s{s_lo}, 0x05040100")
    A(f"s_mov_b32 s{s_hi}, 0x07060302")

    def issue(t):
        b = R + 32 * (t % nbuf)
        for r in range(8):
            A(f"s_add_u32 s{s_tmp}, s{sbase}, {(32*t + r) * rowstride}")
            A(f"buffer_load_dwordx4 {vr(b+4*r,4)}, v{voff}, {sr(srdw,4)}, s{s_tmp} offen")

    for t in range(min(nbuf, ntile)):
        issue(t)
    for t in range(ntile):
        b = R + 32 * (t % nbuf)
        bf = bfr + 4 * (t % 2)
        A(f"ds_read_b128 {vr(bf,4)}, v{bf_addr} offset:{64*t}")
        outstanding_after = min(nbuf - 1, ntile - 1 - t) * 8
        A(f"s_waitcnt vmcnt({outstanding_after}) lgkmcnt(0)")
        for e in range(8):
            tt = T + 4 * (e % 2)
            sel = s_lo if e % 2 == 0 else s_hi
            for p in range(4):
                A(f"v_perm_b32 v{tt+p}, v{b+4*(2*p+1)+e//2}, v{b+4*(2*p)+e//2}, s{sel}")
            A("s_nop 1")
            c = vr(acc + 4 * e, 4) if t > 0 else "0"
            A(f"v_mfma_f32_16x16x32_bf16 {vr(acc+4*e,4)}, {vr(tt,4)}, {vr(bf,4)}, {c}")
        if t + nbuf < ntile:
            issue(t + nbuf)
    A("s_nop 7")
    A("s_nop 1")


def kernel_begin(A, name):
    A.raw(f".globl {name}")
    A.raw(".p2align 8")
    A.raw(f".type {name},@function")
    A.label(name)


def kdesc(name, vgpr, sgpr=102):
    acc = (vgpr + 3) // 4 * 4
    return f""".amdhsa_kernel {name}
  .amdhsa_next_free_vgpr {vgpr}
  .amdhsa_next_free_sgpr {sgpr}
  .amdhsa_accum_offset {acc}
  .amdhsa_group_segment_fixed_size 0
  .amdhsa_kernarg_size 104
  .amdhsa_user_sgpr_count 2
  .amdhsa_user_sgpr_kernarg_segment_ptr 1
  .amdhsa_system_sgpr_workgroup_id_x 1
.end_amdhsa_kernel
"""


def k_qproj(A):
    name = "qproj_kernel"
    kernel_begin(A, name)
    A(f"""s_cmp_ge_u32 s2, 64
    s_cbranch_scc1 L_q_done
    s_load_dwordx2 s[4:5], s[0:1], 0
    s_load_dwordx2 s[6:7], s[0:1], 24
    s_load_dwordx2 s[8:9], s[0:1], 96
    v_lshrrev_b32 v1, 6, v0
    v_and_b32 v2, 63, v0
    s_nop 0
    v_readfirstlane_b32 s24, v1
    s_and_b32 s25, s2, 7
    s_lshr_b32 s26, s2, 3
    s_waitcnt lgkmcnt(0)""")
    srd(A, 12, 4, 8192)
    srd(A, 16, 6, 4194304)
    srd(A, 20, 8, WS_BYTES)
    A(f"""s_lshl_b32 s27, s26, 10
    v_lshlrev_b32 v3, 4, v2
    buffer_load_dwordx4 v[4:7], v3, s[12:15], s27 offen
    s_waitcnt vmcnt(0)""")
    unpack8(A, 4, 8)
    layernorm8(A, 8, 16, 17, 18)
    for i in range(4):
        A(f"v_cvt_pk_bf16_f32 v{4+i}, v{8+2*i}, v{9+2*i}")
    A(f"""s_lshl_b32 s28, s24, 10
    v_add_u32 v3, s28, v3
    ds_write_b128 v3, v[4:7]
    v_lshrrev_b32 v20, 4, v2          ; g
    v_and_b32 v21, 15, v2             ; i
    v_lshlrev_b32 v22, 4, v20
    v_add_u32 v22, s28, v22
    v_lshlrev_b32 v23, 16, v20        ; 8g*8192
    v_lshl_add_u32 v23, v21, 4, v23   ; + 16 i
    s_lshl_b32 s29, s25, 2
    s_add_u32 s29, s29, s24           ; head
    s_lshl_b32 s29, s29, 8
    s_waitcnt lgkmcnt(0)""")
    gemv128(A, 16, 16, 23, 29, 8192, 22, R=64, nbuf=4, T=24, acc=32, bfr=192, s_lo=30, s_hi=31, s_tmp=32)
    for r in range(4):
        for e in range(0, 8, 2):
            A(f"v_cvt_pk_bf16_f32 v{64+4*r+e//2}, v{32+4*e+r}, v{32+4*(e+1)+r}")
    A(f"""v_cmp_eq_u32 vcc, 0, v21
    s_and_saveexec_b64 s[34:35], vcc
    v_lshlrev_b32 v24, 6, v20          ; g*64 bytes
    s_lshl_b32 s33, s26, 13            ; b*8192
    s_add_u32 s33, s33, s29
    s_add_u32 s33, s33, {WS_Q}""")
    for r in range(4):
        A(f"buffer_store_dwordx4 {vr(64+4*r,4)}, v24, s[20:23], s33 offen offset:{16*r}")
    A.label("L_q_done")
    A("s_endpgm")
    return name, kdesc(name, 208)


def k_attn(A, nt=True):
    name = "attn_kernel"
    NT = " nt" if nt else ""
    kernel_begin(A, name)
    A(f"""s_cmp_ge_u32 s2, 256
    s_cbranch_scc1 L_a_done
    s_load_dwordx2 s[4:5], s[0:1], 8
    s_load_dwordx2 s[6:7], s[0:1], 16
    s_load_dwordx2 s[8:9], s[0:1], 96
    v_lshrrev_b32 v1, 6, v0
    v_and_b32 v2, 63, v0
    s_nop 0
    v_readfirstlane_b32 s24, v1
    s_and_b32 s25, s2, 7               ; hkv
    s_lshr_b32 s26, s2, 5              ; b
    s_bfe_u32 s27, s2, 0x20003         ; split
    v_lshrrev_b32 v3, 4, v2            ; g
    v_and_b32 v4, 15, v2               ; i / j
    s_lshl_b32 s28, s26, 3
    s_add_u32 s28, s28, s25            ; pair
    s_lshl_b32 s29, s28, 21
    s_lshl_b32 s30, s27, 19
    s_add_u32 s29, s29, s30
    s_lshl_b32 s30, s24, 13
    s_add_u32 s29, s29, s30
    s_lshl_b32 s31, s24, 15
    """)
    for i in range(4):
        A(f"""v_add_u32 v5, {4*i}, v3
        v_xor_b32 v5, v5, v4
        v_lshlrev_b32 v5, 4, v5
        v_lshl_add_u32 v{10+i}, v3, 8, v5""")
    for i in range(2):
        A(f"""v_add_u32 v5, {4*i}, v3
        v_lshlrev_b32 v5, 1, v5
        v_xor_b32 v5, v5, v4
        v_lshlrev_b32 v5, 4, v5
        v_lshl_add_u32 v{14+i}, v3, 8, v5""")
    A("s_waitcnt lgkmcnt(0)")
    srd(A, 12, 4, 134217728)
    srd(A, 16, 6, 134217728)
    srd(A, 20, 8, WS_BYTES)

    def issue(kind, slot):
        sreg = 29 if kind == "K" else 40
        sd = 12 if kind == "K" else 16
        lds = (0 if kind == "K" else 16384) + 8192 * slot
        for half in range(2):
            A(f"s_add_u32 m0, s31, {lds + 4096*half}")
            if half:
                A(f"s_add_u32 s41, s{sreg}, 4096")
            else:
                A("s_nop 0")
            so = 41 if half else sreg
            for i in range(4):
                vo = (10 + i) if kind == "K" else (14 + i % 2)
                A(f"buffer_load_dwordx4 v{vo}, {sr(sd,4)}, s{so} offen offset:{1024*i}{NT} lds")
        A(f"s_add_u32 s{sreg}, s{sreg}, 32768")

    A("s_mov_b32 s40, s29")
    issue("K", 0)
    issue("V", 0)
    issue("K", 1)
    issue("V", 1)

    A(f"""v_xor_b32 v5, v3, v4
    v_lshlrev_b32 v5, 4, v5
    v_lshl_add_u32 v5, v4, 8, v5
    v_add_u32 v5, s31, v5""")
    for s in range(4):
        A(f"v_xor_b32 v{16+s}, {64*s}, v5")
    A(f"""v_lshrrev_b32 v5, 2, v4          ; r
    v_lshl_add_u32 v5, v3, 2, v5       ; rho
    v_and_b32 v6, 7, v5
    v_lshlrev_b32 v6, 5, v6
    v_lshl_add_u32 v6, v5, 8, v6
    v_and_b32 v7, 3, v4
    v_lshl_add_u32 v6, v7, 3, v6
    v_add_u32 v6, s31, v6""")
    for t in range(8):
        A(f"v_xor_b32 v{20+t}, {32*t}, v6")
    A(f"""v_and_b32 v5, 3, v4
    v_lshlrev_b32 v5, 8, v5
    v_lshl_add_u32 v5, v3, 4, v5
    s_lshl_b32 s32, s26, 13
    s_lshl_b32 s33, s25, 10
    s_add_u32 s32, s32, s33
    s_add_u32 s32, s32, {WS_Q}""")
    QF = 32
    for s in range(4):
        A(f"buffer_load_dwordx4 {vr(QF+4*s,4)}, v5, s[20:23], s32 offen offset:{64*s}")
    KF = 48
    VF = 80
    S = 112
    P = 120
    ACC = 128
    M, L, MX, T0, AL, NM = 124, 125, 126, 127, 28, 29
    T1, T2, T3 = 30, 31, 8
    A(f"""v_mov_b32 v{M}, 0xff800000
    v_mov_b32 v{L}, 0
    s_mov_b32 s34, {LOG2E}""")
    for i in range(32):
        A(f"v_mov_b32 v{ACC+i}, 0")
    A("s_waitcnt vmcnt(0)")

    def tile(slot, do_issue, wK, wV):
        A(f"s_waitcnt vmcnt({wK})")
        for u in range(2):
            for s in range(4):
                A(f"ds_read_b128 {vr(KF+16*u+4*s,4)}, v{16+s} offset:{8192*slot + 4096*u}")
        A("s_waitcnt lgkmcnt(0)")
        if do_issue:
            issue("K", slot)
        for u in range(2):
            for s in range(4):
                c = vr(S + 4 * u, 4) if s > 0 else "0"
                A(f"v_mfma_f32_16x16x32_bf16 {vr(S+4*u,4)}, {vr(KF+16*u+4*s,4)}, {vr(QF+4*s,4)}, {c}")
        A("s_nop 7")
        A("s_nop 1")
        for i in range(0, 8, 2):
            bf16r2(A, S + i, S + i + 1, T0)
        for i in range(8):
            A(f"v_mul_f32 v{S+i}, {SCALE}, v{S+i}")
        for i in range(0, 8, 2):
            bf16r2(A, S + i, S + i + 1, T0)
        A(f"""v_max3_f32 v{MX}, v{S}, v{S+1}, v{S+2}
        v_max3_f32 v{MX}, v{MX}, v{S+3}, v{S+4}
        v_max3_f32 v{MX}, v{MX}, v{S+5}, v{S+6}
        v_max_f32 v{MX}, v{MX}, v{S+7}""")
        reduce_rows(A, MX, T0, "max")
        A(f"""v_max_f32 v{MX}, v{MX}, v{M}
        v_sub_f32 v{T0}, v{M}, v{MX}
        v_mul_f32 v{T0}, {LOG2E}, v{T0}
        v_exp_f32 v{AL}, v{T0}
        v_mul_f32 v{NM}, {NLOG2E}, v{MX}
        v_mov_b32 v{M}, v{MX}""")
        for i in range(8):
            A(f"v_fma_f32 v{S+i}, v{S+i}, s34, v{NM}")
        for i in range(8):
            A(f"v_exp_f32 v{S+i}, v{S+i}")
        A(f"v_mul_f32 v{L}, v{L}, v{AL}")
        for i in range(32):
            A(f"v_mul_f32 v{ACC+i}, v{ACC+i}, v{AL}")
        for i in range(8):
            A(f"v_add_f32 v{L}, v{L}, v{S+i}")
        for i in range(4):
            A(f"v_cvt_pk_bf16_f32 v{P+i}, v{S+2*i}, v{S+2*i+1}")
        A(f"s_waitcnt vmcnt({wV})")
        for t in range(8):
            for u in range(2):
                A(f"ds_read_b64_tr_b16 {vr(VF+4*t+2*u,2)}, v{20+t} offset:{16384 + 8192*slot + 4096*u}")
        A("s_waitcnt lgkmcnt(0)")
        if do_issue:
            issue("V", slot)
        for t in range(8):
            A(f"v_mfma_f32_16x16x32_bf16 {vr(ACC+4*t,4)}, {vr(VF+4*t,4)}, {vr(P,4)}, {vr(ACC+4*t,4)}")
        A("s_nop 3")

    A("s_mov_b32 s35, 0")
    A.label("L_a_loop")
    tile(0, True, 24, 24)
    tile(1, True, 24, 24)
    A("""s_add_u32 s35, s35, 1
    s_cmp_lt_u32 s35, 7
    s_cbranch_scc1 L_a_loop""")
    tile(0, False, 24, 16)
    tile(1, False, 8, 0)
    A("s_nop 7")
    A("s_nop 1")
    reduce_rows(A, L, T0, "add")
    A(f"""v_lshlrev_b32 v5, 9, v4
    v_lshl_add_u32 v5, v3, 4, v5
    v_add_u32 v5, s31, v5
    v_lshlrev_b32 v6, 3, v4
    v_add_u32 v6, s31, v6
    v_cmp_gt_u32 vcc, 4, v4
    s_and_saveexec_b64 s[36:37], vcc""")
    for t in range(8):
        A(f"ds_write_b128 v5, {vr(ACC+4*t,4)} offset:{64*t}")
    A(f"""ds_write_b64 v6, v[{M}:{L}] offset:2048
    s_mov_b64 exec, s[36:37]
    s_waitcnt lgkmcnt(0)
    s_barrier""")
    A(f"""s_lshl_b32 s38, s24, 3
    v_mov_b32 v5, s38
    s_lshl_b32 s38, s24, 9
    v_lshl_add_u32 v6, v2, 3, s38""")
    A("""v_add_u32 v7, 0x10000, v5
    v_add_u32 v9, 0x10000, v6""")
    for w in range(4):
        A(f"ds_read_b64 v[{40+2*w}:{41+2*w}], v{5 if w<2 else 7} offset:{32768*(w%2) + 2048}")
    for w in range(4):
        A(f"ds_read_b64 v[{48+2*w}:{49+2*w}], v{6 if w<2 else 9} offset:{32768*(w%2)}")
    A(f"""s_waitcnt lgkmcnt(0)
    v_max_f32 v56, v40, v42
    v_max3_f32 v56, v56, v44, v46""")
    for w in range(4):
        A(f"""v_sub_f32 v57, v{40+2*w}, v56
        v_mul_f32 v57, {LOG2E}, v57
        v_exp_f32 v{60+w}, v57""")
    A(f"""s_nop 0
    v_mul_f32 v57, v41, v60
    v_mul_f32 v58, v48, v60
    v_mul_f32 v59, v49, v60""")
    for w in range(1, 4):
        A(f"""v_fmac_f32 v57, v{41+2*w}, v{60+w}
        v_fmac_f32 v58, v{48+2*w}, v{60+w}
        v_fmac_f32 v59, v{49+2*w}, v{60+w}""")
    A(f"""s_lshl_b32 s38, s2, 11
    s_add_u32 s38, s38, {WS_PO}
    v_lshlrev_b32 v5, 3, v0
    buffer_store_dwordx2 v[58:59], v5, s[20:23], s38 offen
    s_lshl_b32 s38, s2, 5
    s_add_u32 s38, s38, {WS_PML}
    v_lshlrev_b32 v5, 3, v1
    v_cmp_eq_u32 vcc, 0, v2
    s_and_saveexec_b64 s[36:37], vcc
    buffer_store_dwordx2 v[56:57], v5, s[20:23], s38 offen""")
    A.label("L_a_done")
    A("s_endpgm")
    return name, kdesc(name, 160)


def k_wo(A):
    name = "wo_kernel"
    kernel_begin(A, name)
    A(f"""s_cmp_ge_u32 s2, 256
    s_cbranch_scc1 L_w_done
    s_load_dwordx2 s[6:7], s[0:1], 32
    s_load_dwordx2 s[8:9], s[0:1], 96
    v_lshrrev_b32 v1, 6, v0
    v_and_b32 v2, 63, v0
    s_nop 0
    v_readfirstlane_b32 s24, v1
    s_and_b32 s25, s2, 31              ; h
    s_lshr_b32 s26, s2, 5              ; b
    s_waitcnt lgkmcnt(0)""")
    srd(A, 16, 6, 4194304)
    srd(A, 20, 8, WS_BYTES)
    A(f"""s_lshr_b32 s27, s25, 2           ; hkv
    s_and_b32 s28, s25, 3
    s_lshl_b32 s29, s26, 5
    s_add_u32 s29, s29, s27
    s_lshl_b32 s30, s29, 5
    s_lshl_b32 s31, s28, 3
    s_add_u32 s30, s30, s31
    s_add_u32 s30, s30, {WS_PML}
    s_lshl_b32 s32, s29, 11
    s_lshl_b32 s31, s28, 9
    s_add_u32 s32, s32, s31
    s_add_u32 s32, s32, {WS_PO}
    v_mov_b32 v3, 0
    v_and_b32 v4, 127, v0
    v_lshlrev_b32 v4, 2, v4""")
    for s in range(4):
        A(f"buffer_load_dwordx2 v[{8+2*s}:{9+2*s}], v3, s[20:23], s30 offen offset:{256*s}")
    for s in range(4):
        A(f"s_add_u32 s33, s32, {16384*s}")
        A(f"buffer_load_dword v{16+s}, v4, s[20:23], s33 offen")
    A(f"""s_waitcnt vmcnt(0)
    v_max_f32 v20, v8, v10
    v_max3_f32 v20, v20, v12, v14""")
    for s in range(4):
        A(f"""v_sub_f32 v21, v{8+2*s}, v20
        v_mul_f32 v21, {LOG2E}, v21
        v_exp_f32 v{24+s}, v21""")
    A(f"""s_nop 0
    v_mul_f32 v21, v9, v24
    v_mul_f32 v22, v16, v24""")
    for s in range(1, 4):
        A(f"""v_fmac_f32 v21, v{9+2*s}, v{24+s}
        v_fmac_f32 v22, v{16+s}, v{24+s}""")
    A(f"""v_rcp_f32 v21, v21
    s_nop 0
    v_mul_f32 v22, v22, v21
    v_cvt_pk_bf16_f32 v22, v22, v22
    v_lshrrev_b32 v4, 1, v4
    ds_write_b16 v4, v22
    v_lshrrev_b32 v20, 4, v2          ; g
    v_and_b32 v21, 15, v2             ; i
    v_lshlrev_b32 v22, 4, v20
    v_lshlrev_b32 v23, 13, v20        ; 8g*1024
    v_lshl_add_u32 v23, v21, 4, v23
    s_lshl_b32 s29, s25, 17           ; h*128 rows*1024
    s_lshl_b32 s31, s24, 8
    s_add_u32 s29, s29, s31
    s_waitcnt lgkmcnt(0)
    s_barrier""")
    gemv128(A, 4, 16, 23, 29, 1024, 22, R=64, nbuf=4, T=24, acc=32, bfr=192, s_lo=34, s_hi=35, s_tmp=36)
    for r in range(4):
        for e in range(8):
            A(f"v_mov_b32 v{64+8*r+e}, v{32+4*e+r}")
    A(f"""v_cmp_eq_u32 vcc, 0, v21
    s_and_saveexec_b64 s[38:39], vcc
    v_lshlrev_b32 v24, 7, v20          ; g*32 cols*4
    s_lshl_b32 s33, s2, 11
    s_lshl_b32 s31, s24, 9
    s_add_u32 s33, s33, s31
    s_add_u32 s33, s33, {WS_YP}""")
    for k in range(8):
        A(f"buffer_store_dwordx4 {vr(64+4*k,4)}, v24, s[20:23], s33 offen offset:{16*k}")
    A.label("L_w_done")
    A("s_endpgm")
    return name, kdesc(name, 208)


def k_mix(A):
    name = "mix_kernel"
    kernel_begin(A, name)
    A(f"""s_cmp_ge_u32 s2, 256
    s_cbranch_scc1 L_m_done
    s_load_dwordx2 s[4:5], s[0:1], 0
    s_load_dwordx2 s[8:9], s[0:1], 96
    s_load_dwordx4 s[40:43], s[0:1], 48
    s_load_dwordx4 s[44:47], s[0:1], 64
    s_load_dwordx2 s[48:49], s[0:1], 80
    v_lshrrev_b32 v1, 6, v0
    v_and_b32 v2, 63, v0
    s_nop 0
    v_readfirstlane_b32 s24, v1
    s_and_b32 s25, s2, 31              ; slice
    s_lshr_b32 s26, s2, 5              ; b
    s_waitcnt lgkmcnt(0)""")
    srd(A, 12, 4, 8192)
    srd(A, 20, 8, WS_BYTES)
    srd(A, 52, 40, 3584)
    srd(A, 56, 42, 3584)
    srd(A, 60, 44, 3584)
    srd(A, 64, 46, 2)
    srd(A, 68, 48, 8192)
    A(f"""s_lshl_b32 s27, s26, 16
    s_add_u32 s27, s27, {WS_YP}
    v_lshlrev_b32 v3, 3, v0
    v_lshlrev_b32 v4, 2, v0
    s_lshl_b32 s28, s26, 10
    buffer_load_dword v5, v4, s[12:15], s28 offen""")
    for h in range(32):
        if h % 2 == 0:
            A(f"s_add_u32 s29, s27, {2048*h}")
        A(f"buffer_load_dwordx2 v[{64+2*h}:{65+2*h}], v3, s[20:23], s29 offen offset:{2048*(h%2)}")
    A("v_lshlrev_b32 v6, 1, v0")
    for i in range(7):
        A(f"buffer_load_ushort v{32+i}, v6, s[52:55], 0 offen offset:{512*i}")
        A(f"buffer_load_ushort v{40+i}, v6, s[56:59], 0 offen offset:{512*i}")
        A(f"buffer_load_ushort v{48+i}, v6, s[60:63], 0 offen offset:{512*i}")
    A(f"""v_mov_b32 v7, 0
    buffer_load_ushort v56, v7, s[64:67], 0 offen
    s_waitcnt vmcnt(22)""")
    for h in range(1, 32):
        A(f"v_add_f32 v64, v64, v{64+2*h}")
        A(f"v_add_f32 v65, v65, v{65+2*h}")
    bf16r2(A, 64, 65, 8)
    A(f"""v_lshlrev_b32 v8, 16, v5
    v_and_b32 v9, 0xffff0000, v5
    v_add_f32 v64, v64, v8
    v_add_f32 v65, v65, v9""")
    bf16r2(A, 64, 65, 8)
    A(f"""ds_write_b64 v3, v[64:65]
    s_waitcnt lgkmcnt(0)
    s_barrier
    v_lshlrev_b32 v8, 5, v2
    ds_read_b128 v[16:19], v8
    ds_read_b128 v[20:23], v8 offset:16
    s_waitcnt lgkmcnt(0)""")
    layernorm8(A, 16, 8, 9, 10)
    layernorm8(A, 16, 8, 9, 10)
    A(f"""s_lshl_b32 s30, s25, 1
    s_add_u32 s31, s30, 1
    s_nop 1""")
    for e in range(8):
        A(f"v_readlane_b32 s{72+e}, v{16+e}, s30")
        A(f"v_readlane_b32 s{80+e}, v{16+e}, s31")
    A("s_waitcnt vmcnt(0)")
    for i in range(7):
        A(f"v_lshlrev_b32 v{32+i}, 16, v{32+i}")
        A(f"v_lshlrev_b32 v{40+i}, 16, v{40+i}")
        A(f"v_lshlrev_b32 v{48+i}, 16, v{48+i}")
    import struct
    c1 = -2 * 0.7978845608028654 * 1.4426950408889634
    c3 = c1 * 0.044715
    h1 = "0x%08x" % struct.unpack("<I", struct.pack("<f", c1))[0]
    h3 = "0x%08x" % struct.unpack("<I", struct.pack("<f", c3))[0]
    A(f"""v_mov_b32 v57, {h1}
    s_mov_b32 s32, {h3}""")
    ACC = 96
    for e in range(16):
        for i in range(7):
            u, a, z = 8 + 3 * (i % 2), 9 + 3 * (i % 2), 10 + 3 * (i % 2)
            A(f"""v_fma_f32 v{u}, s{72+e}, v{32+i}, v{40+i}
            v_mul_f32 v{a}, v{u}, v{u}
            v_fma_f32 v{a}, v{a}, s32, v57
            v_mul_f32 v{z}, v{a}, v{u}
            v_exp_f32 v{z}, v{z}
            v_mul_f32 v{u}, v{u}, v{48+i}
            v_add_f32 v{z}, 1.0, v{z}
            v_rcp_f32 v{z}, v{z}
            s_nop 0""")
            if i == 0:
                A(f"v_mul_f32 v{ACC+e}, v{u}, v{z}")
            else:
                A(f"v_fmac_f32 v{ACC+e}, v{u}, v{z}")
    for ctl in ["quad_perm:[1,0,3,2]", "quad_perm:[2,3,0,1]", "row_half_mirror", "row_mirror"]:
        for e in range(16):
            A(f"v_add_f32_dpp v{ACC+e}, v{ACC+e}, v{ACC+e} {ctl} row_mask:0xf bank_mask:0xf")
    A(f"""v_lshrrev_b32 v8, 4, v0
    v_lshlrev_b32 v8, 6, v8
    v_and_b32 v9, 15, v0
    v_cmp_eq_u32 vcc, 0, v9
    s_and_saveexec_b64 s[34:35], vcc""")
    for k in range(4):
        A(f"ds_write_b128 v8, {vr(ACC+4*k,4)} offset:{4096+16*k}")
    A(f"""s_mov_b64 exec, s[34:35]
    s_waitcnt lgkmcnt(0)
    s_barrier
    v_cmp_gt_u32 vcc, 16, v0
    s_and_saveexec_b64 s[34:35], vcc
    s_cbranch_execz L_m_done
    v_lshlrev_b32 v8, 2, v0""")
    for k in range(16):
        A(f"ds_read_b32 v{16+k}, v8 offset:{4096+64*k}")
    A(f"""s_lshl_b32 s30, s25, 6
    v_add_u32 v9, s30, v8
    ds_read_b32 v10, v9
    s_waitcnt lgkmcnt(0)""")
    for k in range(1, 16):
        A(f"v_add_f32 v16, v16, v{16+k}")
    bf16r1(A, 16)
    A(f"""v_lshlrev_b32 v56, 16, v56
    v_add_f32 v16, v16, v56""")
    bf16r1(A, 16)
    A(f"""v_add_f32 v16, v16, v10
    v_cvt_pk_bf16_f32 v16, v16, v16
    v_lshlrev_b32 v8, 1, v0
    s_lshl_b32 s30, s25, 5
    s_add_u32 s30, s30, s28
    buffer_store_short v16, v8, s[68:71], s30 offen""")
    A.label("L_m_done")
    A("s_endpgm")
    return name, kdesc(name, 128)


def main():
    out = sys.argv[1] if len(sys.argv) > 1 else f"cdna_kernels/{NAME}.s"
    A = Asm()
    descs = []
    launches = []
    n, d = k_qproj(A); descs.append(d); launches.append(f"; @launch kernel={n} grid=(64,1,1) block=(256,1,1) lds=4096")
    n, d = k_attn(A); descs.append(d); launches.append(f"; @launch kernel={n} grid=(256,1,1) block=(256,1,1) lds=131072")
    n, d = k_wo(A); descs.append(d); launches.append(f"; @launch kernel={n} grid=(256,1,1) block=(256,1,1) lds=1024")
    n, d = k_mix(A); descs.append(d); launches.append(f"; @launch kernel={n} grid=(256,1,1) block=(256,1,1) lds=8192")
    txt = HEADER + "\n".join(launches) + "\n"
    txt += '.amdgcn_target "amdgcn-amd-amdhsa--gfx950"\n.text\n'
    txt += A.text()
    txt += '.section .rodata,"a"\n'
    for d in descs:
        txt += ".p2align 6\n" + d
    open(out, "w").write(txt)


if __name__ == "__main__":
    main()
```

```python
import sys
import struct
from gen import *

QL = 131072
XN = QL + 1024
WQL = XN + 8192
OB = WQL + 16384
LDS_BYTES = OB + 256
HS = 0
HB = 8192
RS = 16384

CQ = 0
C2 = 128
C3 = 192

POLL_LIMIT = 2000000

W1R, B1R, W2R, XR, B2R = 160, 168, 176, 184, 188


def f32hex(x):
    return "0x%08x" % struct.unpack("<I", struct.pack("<f", x))[0]


def poll(A, label, off_sgpr_or_imm, shift_s, mask, target, vtmp, stmp, scnt):
    A(f"s_mov_b32 s{scnt}, 0")
    A.label(label)
    A(f"""buffer_load_dword v{vtmp}, v{vtmp+1}, s[76:79], 0 offen sc1
    s_waitcnt vmcnt(0)
    v_readfirstlane_b32 s{stmp}, v{vtmp}""")
    if shift_s is not None:
        A(f"s_lshr_b32 s{stmp}, s{stmp}, s{shift_s}")
        A(f"s_and_b32 s{stmp}, s{stmp}, {mask}")
    A(f"""s_cmp_ge_u32 s{stmp}, {target}
    s_cbranch_scc1 {label}_ok
    s_sleep 1
    s_add_u32 s{scnt}, s{scnt}, 1
    s_cmp_lt_u32 s{scnt}, {POLL_LIMIT}
    s_cbranch_scc1 {label}""")
    A.label(label + "_ok")


def load_mix_weights(A):
    A("""v_and_b32 v6, 255, v0
    v_lshlrev_b32 v6, 1, v6""")
    for i in range(7):
        A(f"buffer_load_ushort v{W1R+i}, v6, s[56:59], 0 offen offset:{512*i}")
        A(f"buffer_load_ushort v{B1R+i}, v6, s[60:63], 0 offen offset:{512*i}")
        A(f"buffer_load_ushort v{W2R+i}, v6, s[64:67], 0 offen offset:{512*i}")
    A(f"""v_mov_b32 v7, 0
    buffer_load_ushort v{B2R}, v7, s[68:71], 0 offen
    v_lshlrev_b32 v6, 4, v2
    s_lshl_b32 s42, s26, 10
    buffer_load_dwordx4 {vr(XR,4)}, v6, s[44:47], s42 offen""")


def k_fused(A, nt=True):
    name = NAME + "_kernel"
    NT = " nt" if nt else ""
    kernel_begin(A, name)
    A(f"""s_cmp_ge_u32 s2, 256
    s_cbranch_scc1 L_done
    s_load_dwordx16 s[80:95], s[0:1], 0
    s_load_dwordx8 s[4:11], s[0:1], 64
    s_load_dwordx2 s[96:97], s[0:1], 96
    v_lshrrev_b32 v1, 6, v0
    v_and_b32 v2, 63, v0
    s_nop 0
    v_readfirstlane_b32 s24, v1
    s_and_b32 s25, s2, 7               ; hkv
    s_lshr_b32 s26, s2, 5              ; b
    s_bfe_u32 s27, s2, 0x20003         ; split
    v_lshrrev_b32 v3, 4, v2            ; g
    v_and_b32 v4, 15, v2               ; i / j
    s_waitcnt lgkmcnt(0)""")
    srd(A, 12, 82, 134217728)
    srd(A, 16, 84, 134217728)
    srd(A, 20, 96, WS_BYTES)
    srd(A, 44, 80, 8192)
    srd(A, 48, 86, 4194304)
    srd(A, 52, 88, 4194304)
    srd(A, 56, 92, 3584)
    srd(A, 60, 94, 3584)
    srd(A, 64, 4, 3584)
    srd(A, 68, 6, 2)
    srd(A, 72, 8, 8192)
    srd(A, 76, 10, 256)
    A("""s_cmp_ge_u32 s24, 4
    s_cbranch_scc1 L_helper""")

    A(f"""s_lshl_b32 s28, s26, 3
    s_add_u32 s28, s28, s25            ; pair
    s_lshl_b32 s29, s28, 21
    s_lshl_b32 s30, s27, 19
    s_add_u32 s29, s29, s30
    s_lshl_b32 s30, s24, 13
    s_add_u32 s29, s29, s30
    s_lshl_b32 s31, s24, 15
    """)
    for i in range(4):
        A(f"""v_add_u32 v5, {4*i}, v3
        v_xor_b32 v5, v5, v4
        v_lshlrev_b32 v5, 4, v5
        v_lshl_add_u32 v{10+i}, v3, 8, v5""")
    for i in range(2):
        A(f"""v_add_u32 v5, {4*i}, v3
        v_lshlrev_b32 v5, 1, v5
        v_xor_b32 v5, v5, v4
        v_lshlrev_b32 v5, 4, v5
        v_lshl_add_u32 v{14+i}, v3, 8, v5""")

    def issue(kind, slot):
        sreg = 29 if kind == "K" else 40
        sd = 12 if kind == "K" else 16
        lds = (0 if kind == "K" else 16384) + 8192 * slot
        for half in range(2):
            A(f"s_add_u32 m0, s31, {lds + 4096*half}")
            if half:
                A(f"s_add_u32 s41, s{sreg}, 4096")
            else:
                A("s_nop 0")
            so = 41 if half else sreg
            for i in range(4):
                vo = (10 + i) if kind == "K" else (14 + i % 2)
                A(f"buffer_load_dwordx4 v{vo}, {sr(sd,4)}, s{so} offen offset:{1024*i}{NT} lds")
        A(f"s_add_u32 s{sreg}, s{sreg}, 32768")

    load_mix_weights(A)
    A("s_mov_b32 s40, s29")
    issue("K", 0)
    issue("V", 0)
    issue("K", 1)
    issue("V", 1)

    A(f"""v_xor_b32 v5, v3, v4
    v_lshlrev_b32 v5, 4, v5
    v_lshl_add_u32 v5, v4, 8, v5
    v_add_u32 v5, s31, v5""")
    for s in range(4):
        A(f"v_xor_b32 v{16+s}, {64*s}, v5")
    A(f"""v_lshrrev_b32 v5, 2, v4          ; r
    v_lshl_add_u32 v5, v3, 2, v5       ; rho
    v_and_b32 v6, 7, v5
    v_lshlrev_b32 v6, 5, v6
    v_lshl_add_u32 v6, v5, 8, v6
    v_and_b32 v7, 3, v4
    v_lshl_add_u32 v6, v7, 3, v6
    v_add_u32 v6, s31, v6""")
    for t in range(8):
        A(f"v_xor_b32 v{20+t}, {32*t}, v6")
    QF = 32
    KF = 48
    VF = 80
    S = 112
    P = 120
    ACC = 128
    M, L, MX, T0, AL, NM = 124, 125, 126, 127, 28, 29
    A(f"""v_mov_b32 v{M}, 0xff800000
    v_mov_b32 v{L}, 0
    s_mov_b32 s34, {LOG2E}""")
    for i in range(32):
        A(f"v_mov_b32 v{ACC+i}, 0")
    A(f"""v_and_b32 v5, 3, v4
    v_lshlrev_b32 v5, 8, v5
    v_lshl_add_u32 v5, v3, 4, v5
    v_add_u32 v5, {QL}, v5
    s_barrier
    s_barrier""")
    for s in range(4):
        A(f"ds_read_b128 {vr(QF+4*s,4)}, v5 offset:{64*s}")
    A("s_waitcnt lgkmcnt(0)")

    def tile(slot, do_issue, wK, wV):
        A(f"s_waitcnt vmcnt({wK})")
        for u in range(2):
            for s in range(4):
                A(f"ds_read_b128 {vr(KF+16*u+4*s,4)}, v{16+s} offset:{8192*slot + 4096*u}")
        A("s_waitcnt lgkmcnt(0)")
        if do_issue:
            issue("K", slot)
        for u in range(2):
            for s in range(4):
                c = vr(S + 4 * u, 4) if s > 0 else "0"
                A(f"v_mfma_f32_16x16x32_bf16 {vr(S+4*u,4)}, {vr(KF+16*u+4*s,4)}, {vr(QF+4*s,4)}, {c}")
        A("s_nop 7")
        A("s_nop 1")
        for i in range(0, 8, 2):
            bf16r2(A, S + i, S + i + 1, T0)
        for i in range(8):
            A(f"v_mul_f32 v{S+i}, {SCALE}, v{S+i}")
        for i in range(0, 8, 2):
            bf16r2(A, S + i, S + i + 1, T0)
        A(f"""v_max3_f32 v{MX}, v{S}, v{S+1}, v{S+2}
        v_max3_f32 v{MX}, v{MX}, v{S+3}, v{S+4}
        v_max3_f32 v{MX}, v{MX}, v{S+5}, v{S+6}
        v_max_f32 v{MX}, v{MX}, v{S+7}""")
        reduce_rows(A, MX, T0, "max")
        A(f"""v_max_f32 v{MX}, v{MX}, v{M}
        v_sub_f32 v{T0}, v{M}, v{MX}
        v_mul_f32 v{T0}, {LOG2E}, v{T0}
        v_exp_f32 v{AL}, v{T0}
        v_mul_f32 v{NM}, {NLOG2E}, v{MX}
        v_mov_b32 v{M}, v{MX}""")
        for i in range(8):
            A(f"v_fma_f32 v{S+i}, v{S+i}, s34, v{NM}")
        for i in range(8):
            A(f"v_exp_f32 v{S+i}, v{S+i}")
        A(f"v_mul_f32 v{L}, v{L}, v{AL}")
        for i in range(32):
            A(f"v_mul_f32 v{ACC+i}, v{ACC+i}, v{AL}")
        for i in range(8):
            A(f"v_add_f32 v{L}, v{L}, v{S+i}")
        for i in range(4):
            A(f"v_cvt_pk_bf16_f32 v{P+i}, v{S+2*i}, v{S+2*i+1}")
        A(f"s_waitcnt vmcnt({wV})")
        for t in range(8):
            for u in range(2):
                A(f"ds_read_b64_tr_b16 {vr(VF+4*t+2*u,2)}, v{20+t} offset:{16384 + 8192*slot + 4096*u}")
        A("s_waitcnt lgkmcnt(0)")
        if do_issue:
            issue("V", slot)
        for t in range(8):
            A(f"v_mfma_f32_16x16x32_bf16 {vr(ACC+4*t,4)}, {vr(VF+4*t,4)}, {vr(P,4)}, {vr(ACC+4*t,4)}")
        A("s_nop 3")

    A("s_mov_b32 s35, 0")
    A.label("L_a_loop")
    tile(0, True, 24, 24)
    tile(1, True, 24, 24)
    A("""s_add_u32 s35, s35, 1
    s_cmp_lt_u32 s35, 7
    s_cbranch_scc1 L_a_loop""")
    tile(0, False, 24, 16)
    tile(1, False, 8, 0)
    A("s_nop 7")
    A("s_nop 1")
    reduce_rows(A, L, T0, "add")
    A(f"""v_lshlrev_b32 v5, 9, v4
    v_lshl_add_u32 v5, v3, 4, v5
    v_add_u32 v5, s31, v5
    v_lshlrev_b32 v6, 3, v4
    v_add_u32 v6, s31, v6
    v_cmp_gt_u32 vcc, 4, v4
    s_and_saveexec_b64 s[36:37], vcc""")
    for t in range(8):
        A(f"ds_write_b128 v5, {vr(ACC+4*t,4)} offset:{64*t}")
    A(f"""ds_write_b64 v6, v[{M}:{L}] offset:2048
    s_mov_b64 exec, s[36:37]
    s_waitcnt lgkmcnt(0)
    s_barrier                       ; B3
    s_barrier                       ; B4
    s_barrier                       ; B5
    s_branch L_final""")

    A.label("L_helper")
    A(f"""s_sub_u32 s28, s24, 4              ; hw
    s_lshl_b32 s29, s28, 11
    v_lshlrev_b32 v5, 4, v2
    buffer_load_dwordx4 v[8:11], v5, s[44:47], s29 offen
    buffer_load_dwordx4 v[12:15], v5, s[44:47], s29 offen offset:1024
    s_lshr_b32 s30, s2, 3
    s_lshl_b32 s31, s25, 10
    s_lshl_b32 s30, s30, 5
    s_add_u32 s30, s30, s31
    s_cmp_lg_u32 s28, 0
    s_cbranch_scc1 L_h_nodma
    v_lshrrev_b32 v6, 1, v2
    v_lshlrev_b32 v6, 13, v6
    v_and_b32 v7, 1, v2
    v_lshl_add_u32 v6, v7, 4, v6
    s_mov_b32 s31, s30""")
    for i in range(16):
        A(f"""s_mov_b32 m0, {WQL + 1024*i}
        s_nop 0
        buffer_load_dwordx4 v6, s[48:51], s31 offen lds
        s_add_u32 s31, s31, 262144""")
    A("s_waitcnt vmcnt(16)")
    A("s_branch L_h_ln")
    A.label("L_h_nodma")
    A("s_waitcnt vmcnt(0)")
    A.label("L_h_ln")
    unpack8(A, 8, 16)
    unpack8(A, 12, 24)
    layernorm8(A, 16, 32, 33, 34)
    layernorm8(A, 24, 32, 33, 34)
    for i in range(4):
        A(f"v_cvt_pk_bf16_f32 v{8+i}, v{16+2*i}, v{17+2*i}")
        A(f"v_cvt_pk_bf16_f32 v{12+i}, v{24+2*i}, v{25+2*i}")
    A(f"""s_add_u32 s31, s29, {XN}
    v_add_u32 v5, s31, v5
    ds_write_b128 v5, v[8:11]
    ds_write_b128 v5, v[12:15] offset:1024
    s_waitcnt lgkmcnt(0)
    s_barrier                       ; B1
    s_cmp_lg_u32 s28, 0
    s_cbranch_scc1 L_h_b2""")
    A(f"""v_lshrrev_b32 v5, 2, v4          ; r
    v_lshl_add_u32 v5, v3, 3, v5       ; 8g + r
    v_lshlrev_b32 v5, 5, v5
    v_and_b32 v6, 3, v4
    v_lshl_add_u32 v5, v6, 3, v5
    v_add_u32 v5, {WQL}, v5
    v_and_b32 v6, 7, v4
    v_lshlrev_b32 v6, 10, v6
    v_lshl_add_u32 v6, v3, 4, v6
    v_add_u32 v6, {XN}, v6
    s_waitcnt vmcnt(0)""")
    for t in range(16):
        a = 16 + 8 * (t % 4)
        A(f"""ds_read_b64_tr_b16 {vr(a,2)}, v5 offset:{1024*t}
        ds_read_b64_tr_b16 {vr(a+2,2)}, v5 offset:{1024*t+128}
        ds_read_b128 {vr(a+4,4)}, v6 offset:{64*t}""")
        if t >= 3:
            tt = t - 3
            aa = 16 + 8 * (tt % 4)
            A("s_waitcnt lgkmcnt(9)")
            c = "v[8:11]" if tt > 0 else "0"
            A(f"v_mfma_f32_16x16x32_bf16 v[8:11], {vr(aa,4)}, {vr(aa+4,4)}, {c}")
    for tt in range(13, 16):
        aa = 16 + 8 * (tt % 4)
        A(f"s_waitcnt lgkmcnt({3*(15-tt)})")
        A(f"v_mfma_f32_16x16x32_bf16 v[8:11], {vr(aa,4)}, {vr(aa+4,4)}, v[8:11]")
    A(f"""s_nop 7
    s_nop 1
    v_cvt_pk_bf16_f32 v12, v8, v9
    v_cvt_pk_bf16_f32 v13, v10, v11
    v_lshlrev_b32 v5, 13, v4
    v_lshl_add_u32 v5, v3, 3, v5
    s_add_u32 s31, s30, {WS_Q}
    v_cmp_gt_u32 vcc, 8, v4
    s_and_saveexec_b64 s[36:37], vcc
    buffer_store_dwordx2 v[12:13], v5, s[20:23], s31 offen sc1
    s_mov_b64 exec, s[36:37]
    s_waitcnt vmcnt(0)
    s_lshl_b32 s31, s25, 2
    v_mov_b32 v7, s31
    v_mov_b32 v6, 1
    s_mov_b64 exec, 1
    buffer_atomic_add v6, v7, s[76:79], 0 offen offset:{CQ}
    s_mov_b64 exec, -1""")
    poll(A, "L_pollq", None, None, None, 32, 6, 32, 33)
    A(f"""s_lshl_b32 s31, s26, 13
    s_lshl_b32 s32, s25, 10
    s_add_u32 s31, s31, s32
    s_add_u32 s31, s31, {WS_Q}
    v_lshlrev_b32 v5, 4, v2
    buffer_load_dwordx4 v[8:11], v5, s[20:23], s31 offen sc1
    v_add_u32 v5, {QL}, v5
    s_waitcnt vmcnt(0)
    ds_write_b128 v5, v[8:11]
    s_waitcnt lgkmcnt(0)""")
    A.label("L_h_b2")
    A("s_barrier                       ; B2")
    TW = 32
    RW = 192
    A(f"""v_lshlrev_b32 v5, 13, v3          ; 8g*1024
    v_lshl_add_u32 v5, v4, 4, v5
    s_lshl_b32 s31, s25, 2
    s_add_u32 s31, s31, s27
    s_lshl_b32 s31, s31, 17
    s_lshl_b32 s32, s28, 8
    s_add_u32 s31, s31, s32
    s_mov_b32 s38, 0x05040100
    s_mov_b32 s39, 0x07060302""")
    RW2 = 224
    for t in range(4):
        base = RW if t == 0 else TW + 32 * t
        for r in range(8):
            A(f"s_add_u32 s32, s31, {(32*t + r)*1024}")
            A(f"buffer_load_dwordx4 {vr(base+4*r,4)}, v5, s[52:55], s32 offen")
    load_mix_weights(A)
    A("s_waitcnt vmcnt(0)")

    def transpose(src, dst):
        for e in range(8):
            sel = 38 if e % 2 == 0 else 39
            for p in range(4):
                A(f"v_perm_b32 v{dst+4*e+p}, v{src+4*(2*p+1)+e//2}, v{src+4*(2*p)+e//2}, s{sel}")
    transpose(RW, TW)
    for t in range(1, 4):
        transpose(TW + 32 * t, RW2)
        for i in range(32):
            A(f"v_mov_b32 v{TW+32*t+i}, v{RW2+i}")
    A(f"""s_barrier                       ; B3
    s_cmp_lg_u32 s28, 0
    s_cbranch_scc1 L_h_b4""")
    A(f"""v_lshlrev_b32 v5, 5, v2
    v_add_u32 v6, 0x10000, v5
    v_lshlrev_b32 v7, 3, v3
    v_add_u32 v8, 0x10000, v7""")
    O = 192
    for w in range(4):
        A(f"ds_read_b64 v[{10+2*w}:{11+2*w}], v{7 if w<2 else 8} offset:{32768*(w%2) + 2048}")
    for w in range(4):
        A(f"ds_read_b128 {vr(O+8*w,4)}, v{5 if w<2 else 6} offset:{32768*(w%2)}")
        A(f"ds_read_b128 {vr(O+8*w+4,4)}, v{5 if w<2 else 6} offset:{32768*(w%2)+16}")
    A(f"""s_waitcnt lgkmcnt(0)
    v_max_f32 v18, v10, v12
    v_max3_f32 v18, v18, v14, v16""")
    for w in range(4):
        A(f"""v_sub_f32 v19, v{10+2*w}, v18
        v_mul_f32 v19, {LOG2E}, v19
        v_exp_f32 v{20+w}, v19""")
    A(f"""s_nop 0
    v_mul_f32 v19, v11, v20""")
    for w in range(1, 4):
        A(f"v_fmac_f32 v19, v{11+2*w}, v{20+w}")
    for i in range(8):
        A(f"v_mul_f32 v{O+i}, v{O+i}, v20")
    for w in range(1, 4):
        for i in range(8):
            A(f"v_fmac_f32 v{O+i}, v{O+8*w+i}, v{20+w}")
    A(f"""s_lshl_b32 s31, s2, 11
    s_add_u32 s31, s31, {WS_PO}
    buffer_store_dwordx4 {vr(O,4)}, v5, s[20:23], s31 offen sc1
    buffer_store_dwordx4 {vr(O+4,4)}, v5, s[20:23], s31 offen offset:16 sc1
    s_lshl_b32 s31, s2, 5
    s_add_u32 s31, s31, {WS_PML}
    v_cmp_eq_u32 vcc, 0, v4
    s_and_saveexec_b64 s[36:37], vcc
    buffer_store_dwordx2 v[18:19], v7, s[20:23], s31 offen sc1
    s_mov_b64 exec, s[36:37]
    s_waitcnt vmcnt(0)
    s_lshl_b32 s31, s26, 2
    s_add_u32 s31, s31, {C2}
    v_mov_b32 v7, s31
    s_lshl_b32 s34, s25, 2
    s_lshl_b32 s32, 1, s34
    v_mov_b32 v6, s32
    s_mov_b64 exec, 1
    buffer_atomic_add v6, v7, s[76:79], 0 offen
    s_mov_b64 exec, -1""")
    poll(A, "L_poll2", None, 34, 15, 4, 6, 32, 33)
    A(f"""s_lshl_b32 s31, s26, 5
    s_add_u32 s31, s31, s25
    s_lshl_b32 s32, s31, 5
    s_lshl_b32 s33, s27, 3
    s_add_u32 s32, s32, s33
    s_add_u32 s32, s32, {WS_PML}
    s_lshl_b32 s31, s31, 11
    s_lshl_b32 s33, s27, 9
    s_add_u32 s31, s31, s33
    s_add_u32 s31, s31, {WS_PO}
    v_mov_b32 v5, 0
    v_lshlrev_b32 v6, 3, v2""")
    for s in range(4):
        A(f"buffer_load_dwordx2 v[{10+2*s}:{11+2*s}], v5, s[20:23], s32 offen offset:{256*s} sc1")
    for s in range(4):
        A(f"s_add_u32 s33, s31, {16384*s}")
        A(f"buffer_load_dwordx2 v[{O+2*s}:{O+1+2*s}], v6, s[20:23], s33 offen sc1")
    A(f"""s_waitcnt vmcnt(0)
    v_max_f32 v18, v10, v12
    v_max3_f32 v18, v18, v14, v16""")
    for s in range(4):
        A(f"""v_sub_f32 v19, v{10+2*s}, v18
        v_mul_f32 v19, {LOG2E}, v19
        v_exp_f32 v{20+s}, v19""")
    A(f"""s_nop 0
    v_mul_f32 v19, v11, v20
    v_mul_f32 v24, v{O}, v20
    v_mul_f32 v25, v{O+1}, v20""")
    for s in range(1, 4):
        A(f"""v_fmac_f32 v19, v{11+2*s}, v{20+s}
        v_fmac_f32 v24, v{O+2*s}, v{20+s}
        v_fmac_f32 v25, v{O+1+2*s}, v{20+s}""")
    A(f"""v_rcp_f32 v19, v19
    s_nop 0
    v_mul_f32 v24, v24, v19
    v_mul_f32 v25, v25, v19
    v_cvt_pk_bf16_f32 v24, v24, v25
    v_lshlrev_b32 v6, 2, v2
    v_add_u32 v6, {OB}, v6
    ds_write_b32 v6, v24
    s_waitcnt lgkmcnt(0)""")
    A.label("L_h_b4")
    A(f"""s_barrier                       ; B4
    v_lshlrev_b32 v6, 4, v3
    v_add_u32 v6, {OB}, v6""")
    for t in range(4):
        A(f"ds_read_b128 {vr(8+4*t,4)}, v6 offset:{64*t}")
    A("s_waitcnt lgkmcnt(0)")
    AC = 192
    for t in range(4):
        for e in range(8):
            c = vr(AC + 4 * e, 4) if t > 0 else "0"
            A(f"v_mfma_f32_16x16x32_bf16 {vr(AC+4*e,4)}, {vr(TW+32*t+4*e,4)}, {vr(8+4*t,4)}, {c}")
    A("s_nop 7")
    A("s_nop 1")
    for r in range(4):
        for e in range(8):
            A(f"v_mov_b32 v{224+8*r+e}, v{AC+4*e+r}")
    A(f"""v_cmp_eq_u32 vcc, 0, v4
    s_and_saveexec_b64 s[36:37], vcc
    v_lshlrev_b32 v5, 7, v3
    s_lshl_b32 s31, s26, 16
    s_lshl_b32 s32, s25, 2
    s_add_u32 s32, s32, s27
    s_lshl_b32 s32, s32, 11
    s_add_u32 s31, s31, s32
    s_lshl_b32 s32, s28, 9
    s_add_u32 s31, s31, s32
    s_add_u32 s31, s31, {WS_YP}""")
    for k in range(8):
        A(f"buffer_store_dwordx4 {vr(224+4*k,4)}, v5, s[20:23], s31 offen offset:{16*k} sc1")
    A(f"""s_mov_b64 exec, s[36:37]
    s_waitcnt vmcnt(0)
    s_barrier                       ; B5
    s_cmp_lg_u32 s28, 0
    s_cbranch_scc1 L_final
    s_lshl_b32 s31, s26, 2
    s_add_u32 s31, s31, {C3}
    v_mov_b32 v7, s31
    v_mov_b32 v6, 1
    s_mov_b64 exec, 1
    buffer_atomic_add v6, v7, s[76:79], 0 offen
    s_mov_b64 exec, -1""")
    poll(A, "L_poll3", None, None, None, 32, 6, 32, 33)

    A.label("L_final")
    A(f"""s_barrier                       ; B6
    v_and_b32 v5, 127, v0
    v_lshlrev_b32 v5, 4, v5
    v_lshrrev_b32 v6, 7, v0            ; hg
    v_lshl_add_u32 v7, v6, 14, v5      ; hg*8*2048 + 16q
    s_lshl_b32 s31, s26, 16
    s_add_u32 s31, s31, {WS_YP}""")
    for k in range(8):
        if k % 2 == 0:
            A(f"s_add_u32 s32, s31, {2048*k}")
        A(f"buffer_load_dwordx4 {vr(16+4*k,4)}, v7, s[20:23], s32 offen offset:{2048*(k%2)} sc1")
    A(f"""v_lshl_add_u32 v5, v6, 11, v5
    s_waitcnt vmcnt(0)""")
    for k in range(1, 8):
        for i in range(4):
            A(f"v_add_f32 v{16+i}, v{16+i}, v{16+4*k+i}")
    A(f"""ds_write_b128 v5, v[16:19] offset:{HS}
    s_waitcnt lgkmcnt(0)
    s_barrier                       ; B7
    v_lshlrev_b32 v5, 5, v2""")
    for hg in range(4):
        A(f"ds_read_b128 {vr(16+8*hg,4)}, v5 offset:{HS+2048*hg}")
        A(f"ds_read_b128 {vr(20+8*hg,4)}, v5 offset:{HS+2048*hg+16}")
    unpack8(A, XR, 48)
    A("s_waitcnt lgkmcnt(0)")
    for hg in range(1, 4):
        for i in range(8):
            A(f"v_add_f32 v{16+i}, v{16+i}, v{16+8*hg+i}")
    for i in range(0, 8, 2):
        bf16r2(A, 16 + i, 17 + i, 8)
    for i in range(8):
        A(f"v_add_f32 v{16+i}, v{16+i}, v{48+i}")
    for i in range(0, 8, 2):
        bf16r2(A, 16 + i, 17 + i, 8)
    A(f"""ds_write_b128 v5, v[16:19] offset:{HB}
    ds_write_b128 v5, v[20:23] offset:{HB+16}""")
    layernorm8(A, 16, 8, 9, 10)
    layernorm8(A, 16, 8, 9, 10)
    A(f"""s_and_b32 s30, s2, 31
    s_lshl_b32 s30, s30, 1
    s_lshr_b32 s31, s24, 2
    s_add_u32 s30, s30, s31
    s_nop 1""")
    for e in range(8):
        A(f"v_readlane_b32 s{80+e}, v{16+e}, s30")
    for i in range(7):
        A(f"v_lshlrev_b32 v{W1R+i}, 16, v{W1R+i}")
        A(f"v_lshlrev_b32 v{B1R+i}, 16, v{B1R+i}")
        A(f"v_lshlrev_b32 v{W2R+i}, 16, v{W2R+i}")
    c1 = -2 * 0.7978845608028654 * 1.4426950408889634
    c3 = c1 * 0.044715
    A(f"""v_mov_b32 v57, {f32hex(c1)}
    s_mov_b32 s32, {f32hex(c3)}""")
    MA = 96
    for e in range(8):
        for i in range(7):
            u, a, z = 8 + 3 * (i % 2), 9 + 3 * (i % 2), 10 + 3 * (i % 2)
            A(f"""v_fma_f32 v{u}, s{80+e}, v{W1R+i}, v{B1R+i}
            v_mul_f32 v{a}, v{u}, v{u}
            v_fma_f32 v{a}, v{a}, s32, v57
            v_mul_f32 v{z}, v{a}, v{u}
            v_exp_f32 v{z}, v{z}
            v_mul_f32 v{u}, v{u}, v{W2R+i}
            v_add_f32 v{z}, 1.0, v{z}
            v_rcp_f32 v{z}, v{z}
            s_nop 0""")
            if i == 0:
                A(f"v_mul_f32 v{MA+e}, v{u}, v{z}")
            else:
                A(f"v_fmac_f32 v{MA+e}, v{u}, v{z}")
    for ctl in ["quad_perm:[1,0,3,2]", "quad_perm:[2,3,0,1]", "row_half_mirror", "row_mirror"]:
        for e in range(8):
            A(f"v_add_f32_dpp v{MA+e}, v{MA+e}, v{MA+e} {ctl} row_mask:0xf bank_mask:0xf")
    A(f"""v_lshrrev_b32 v8, 4, v0
    v_lshlrev_b32 v8, 5, v8
    v_cmp_eq_u32 vcc, 0, v4
    s_and_saveexec_b64 s[34:35], vcc""")
    for k in range(2):
        A(f"ds_write_b128 v8, {vr(MA+4*k,4)} offset:{RS+16*k}")
    A(f"""s_mov_b64 exec, s[34:35]
    s_waitcnt lgkmcnt(0)
    s_barrier                       ; B8
    v_cmp_gt_u32 vcc, 16, v0
    s_and_saveexec_b64 s[34:35], vcc
    s_cbranch_execz L_done
    v_lshrrev_b32 v8, 3, v0
    v_lshlrev_b32 v8, 9, v8
    v_and_b32 v9, 7, v0
    v_lshl_add_u32 v8, v9, 2, v8""")
    for k in range(16):
        A(f"ds_read_b32 v{16+k}, v8 offset:{RS+32*k}")
    A(f"""s_and_b32 s30, s2, 31
    s_lshl_b32 s30, s30, 6
    v_lshlrev_b32 v9, 2, v0
    v_add_u32 v9, s30, v9
    ds_read_b32 v10, v9 offset:{HB}
    s_waitcnt lgkmcnt(0)""")
    for k in range(1, 16):
        A(f"v_add_f32 v16, v16, v{16+k}")
    bf16r1(A, 16)
    A(f"""v_lshlrev_b32 v{B2R}, 16, v{B2R}
    v_add_f32 v16, v16, v{B2R}""")
    bf16r1(A, 16)
    A(f"""v_add_f32 v16, v16, v10
    v_cvt_pk_bf16_f32 v16, v16, v16
    v_lshlrev_b32 v8, 1, v0
    s_lshr_b32 s30, s30, 1
    s_lshl_b32 s31, s26, 10
    s_add_u32 s30, s30, s31
    buffer_store_short v16, v8, s[72:75], s30 offen""")
    A.label("L_done")
    A("s_endpgm")
    return name, kdesc(name, 256)


def main():
    out = sys.argv[1] if len(sys.argv) > 1 else f"cdna_kernels/{NAME}.s"
    A = Asm()
    n, d = k_fused(A)
    txt = HEADER + f"; @launch grid=(256,1,1) block=(512,1,1) lds={LDS_BYTES}\n"
    txt += '.amdgcn_target "amdgcn-amd-amdhsa--gfx950"\n.text\n'
    txt += A.text()
    txt += '.section .rodata,"a"\n.p2align 6\n' + d
    open(out, "w").write(txt)


if __name__ == "__main__":
    main()
```

```python
import sys
import struct
from gen import Asm, vr, sr, srd, allreduce, reduce_rows, bf16r1, bf16r2, layernorm8, unpack8, kernel_begin, kdesc, HEADER, NAME, SCALE, LOG2E, NLOG2E

WS_QT = 0x0
WS_PT = 0x100000
WS_PML = 0x200000
WS_YT = 0x300000
WS_ST = 0x380000
WS_BYTES = 0x400000

QL = 131072
XN = QL + 1024
WQL = XN + 8192
OB = WQL + 16384
YL = OB + 2048
TAGL = YL + 4096
LDS_BYTES = TAGL + 16
HS = 0
HB = 8192
RS = 16384

POLL_LIMIT = 1000000
TAG = 43

QF, KF, VF, S, P, M, L = 32, 48, 64, 80, 84, 86, 87
MX, T0, AL, NM = 28, 29, 30, 31
ACC = 96
TW = 128
RAW = 48
W1R, B1R, W2R, XR, B2R, STV = 224, 232, 240, 250, 254, 255

STAMPS = False
OPT = {"na": "1", "nb": "2"}


def f32hex(x):
    return "0x%08x" % struct.unpack("<I", struct.pack("<f", x))[0]


def stamp(A, idx):
    if not STAMPS:
        return
    A(f"""s_memrealtime s[98:99]
    s_waitcnt lgkmcnt(0)
    v_writelane_b32 v{STV}, s98, {idx}""")


def tagged_poll(A, label, loads, tagregs, vt, scnt):
    A(f"s_mov_b32 s{scnt}, 0")
    A.label(label)
    loads()
    A("s_waitcnt vmcnt(0)")
    A(f"v_xor_b32 v{vt}, s{TAG}, v{tagregs[0]}")
    for t in tagregs[1:]:
        A(f"v_xor_b32 v{vt+1}, s{TAG}, v{t}")
        A(f"v_or_b32 v{vt}, v{vt}, v{vt+1}")
    A(f"""v_cmp_ne_u32 vcc, 0, v{vt}
    s_cmp_eq_u64 vcc, 0
    s_cbranch_scc1 {label}_ok
    s_sleep 1
    s_add_u32 s{scnt}, s{scnt}, 1
    s_cmp_lt_u32 s{scnt}, {POLL_LIMIT}
    s_cbranch_scc1 {label}""")
    A.label(label + "_ok")


def k_fused(A):
    name = NAME + "_kernel"
    NT = " nt"
    na, nb = int(OPT["na"]), int(OPT["nb"])
    kernel_begin(A, name)
    A(f"""s_cmp_ge_u32 s2, 256
    s_cbranch_scc1 L_done
    s_load_dwordx16 s[80:95], s[0:1], 0
    s_load_dwordx8 s[4:11], s[0:1], 64
    s_load_dwordx2 s[96:97], s[0:1], 96
    v_lshrrev_b32 v1, 6, v0
    v_and_b32 v2, 63, v0
    s_nop 0
    v_readfirstlane_b32 s24, v1
    s_and_b32 s25, s2, 7               ; hkv
    s_lshr_b32 s26, s2, 5              ; b
    s_bfe_u32 s27, s2, 0x20003         ; split
    v_lshrrev_b32 v3, 4, v2            ; g
    v_and_b32 v4, 15, v2               ; i / j
    s_and_b32 s28, s24, 3
    s_waitcnt lgkmcnt(0)""")
    srd(A, 76, 10, 256)
    if STAMPS:
        A(f"v_mov_b32 v{STV}, 0")
    stamp(A, 0)
    A(f"""s_or_b32 s30, s2, s24
    s_cmp_lg_u32 s30, 0
    s_cbranch_scc1 L_notag
    v_mov_b32 v7, 0
    s_memrealtime s[98:99]
    s_waitcnt lgkmcnt(0)
    s_or_b32 s98, s98, 1
    v_mov_b32 v6, s98
    s_mov_b64 exec, 1
    buffer_store_dword v6, v7, s[76:79], 0 offen sc1
    s_mov_b64 exec, -1""")
    A.label("L_notag")
    srd(A, 48, 86, 4194304)
    srd(A, 44, 80, 8192)
    A(f"""s_lshr_b32 s30, s2, 3
    s_cmp_lg_u32 s24, 0
    s_cbranch_scc1 L_nodma
    s_lshl_b32 s31, s25, 10
    s_lshl_b32 s33, s30, 5
    s_add_u32 s33, s33, s31
    v_lshrrev_b32 v6, 1, v2
    v_lshlrev_b32 v6, 13, v6
    v_and_b32 v7, 1, v2
    v_lshl_add_u32 v6, v7, 4, v6""")
    for i in range(16):
        A(f"""s_mov_b32 m0, {WQL + 1024*i}
        s_nop 0
        buffer_load_dwordx4 v6, s[48:51], s33 offen lds
        s_add_u32 s33, s33, 262144""")
    A.label("L_nodma")
    A(f"""s_lshl_b32 s29, s24, 10
    v_lshlrev_b32 v5, 4, v2
    buffer_load_dwordx4 v[192:195], v5, s[44:47], s29 offen""")
    srd(A, 12, 82, 134217728)
    srd(A, 16, 84, 134217728)
    srd(A, 20, 96, WS_BYTES)
    srd(A, 52, 88, 4194304)
    srd(A, 56, 92, 3584)
    srd(A, 60, 94, 3584)
    srd(A, 64, 4, 3584)
    srd(A, 68, 6, 2)
    srd(A, 72, 8, 8192)
    A(f"""v_lshlrev_b32 v5, 13, v3          ; 8g*1024
    v_lshl_add_u32 v5, v4, 4, v5
    s_lshl_b32 s31, s25, 2
    s_add_u32 s31, s31, s28
    s_lshl_b32 s31, s31, 17
    s_lshr_b32 s32, s24, 2
    s_lshl_b32 s32, s32, 16
    s_add_u32 s31, s31, s32
    s_lshl_b32 s32, s27, 8
    s_add_u32 s31, s31, s32""")
    for t in range(2):
        for r in range(8):
            A(f"s_add_u32 s32, s31, {(32*t + r)*1024}")
            A(f"buffer_load_dwordx4 {vr(RAW+32*t+4*r,4)}, v5, s[52:55], s32 offen")
    A("""v_and_b32 v6, 255, v0
    v_lshlrev_b32 v6, 1, v6""")
    for i in range(7):
        A(f"buffer_load_ushort v{W1R+i}, v6, s[56:59], 0 offen offset:{512*i}")
        A(f"buffer_load_ushort v{B1R+i}, v6, s[60:63], 0 offen offset:{512*i}")
        A(f"buffer_load_ushort v{W2R+i}, v6, s[64:67], 0 offen offset:{512*i}")
    A(f"""v_mov_b32 v7, 0
    buffer_load_ushort v{B2R}, v7, s[68:71], 0 offen
    v_lshlrev_b32 v6, 4, v2
    s_lshl_b32 s42, s26, 10
    buffer_load_dwordx4 {vr(XR,4)}, v6, s[44:47], s42 offen""")
    A(f"""s_lshl_b32 s31, s26, 3
    s_add_u32 s31, s31, s25            ; pair
    s_lshl_b32 s29, s31, 21
    s_lshl_b32 s31, s27, 19
    s_add_u32 s29, s29, s31
    s_lshl_b32 s31, s24, 12
    s_add_u32 s29, s29, s31
    s_mov_b32 s40, s29                 ; V
    s_lshl_b32 s31, s24, 14
    """)
    for i in range(4):
        A(f"""v_add_u32 v5, {4*i}, v3
        v_xor_b32 v5, v5, v4
        v_lshlrev_b32 v5, 4, v5
        v_lshl_add_u32 v{10+i}, v3, 8, v5""")
    for i in range(2):
        A(f"""v_add_u32 v5, {4*i}, v3
        v_lshlrev_b32 v5, 1, v5
        v_xor_b32 v5, v5, v4
        v_lshlrev_b32 v5, 4, v5
        v_lshl_add_u32 v{14+i}, v3, 8, v5""")

    def issue(kind, slot):
        sreg = 29 if kind == "K" else 40
        sd = 12 if kind == "K" else 16
        lds = (0 if kind == "K" else 8192) + 4096 * slot
        A(f"s_add_u32 m0, s31, {lds}")
        A("s_nop 0")
        for i in range(4):
            vo = (10 + i) if kind == "K" else (14 + i % 2)
            A(f"buffer_load_dwordx4 v{vo}, {sr(sd,4)}, s{sreg} offen offset:{1024*i}{NT} lds")
        A(f"s_add_u32 s{sreg}, s{sreg}, 32768")

    seq = [("K", 0), ("V", 0), ("K", 1), ("V", 1)]
    for x in seq[:na]:
        issue(*x)
    A(f"""v_xor_b32 v5, v3, v4
    v_lshlrev_b32 v5, 4, v5
    v_lshl_add_u32 v5, v4, 8, v5
    v_add_u32 v5, s31, v5""")
    for s in range(4):
        A(f"v_xor_b32 v{16+s}, {64*s}, v5")
    A(f"""v_lshrrev_b32 v5, 2, v4          ; r
    v_lshl_add_u32 v5, v3, 2, v5       ; rho
    v_and_b32 v6, 7, v5
    v_lshlrev_b32 v6, 5, v6
    v_lshl_add_u32 v6, v5, 8, v6
    v_and_b32 v7, 3, v4
    v_lshl_add_u32 v6, v7, 3, v6
    v_add_u32 v6, s31, v6""")
    for t in range(8):
        A(f"v_xor_b32 v{20+t}, {32*t}, v6")
    A(f"""s_mov_b32 s34, {LOG2E}
    s_mov_b32 s38, 0x05040100
    s_mov_b32 s39, 0x07060302
    s_waitcnt vmcnt({39 + 4*na})""")
    stamp(A, 12)
    unpack8(A, 192, 200)
    layernorm8(A, 200, 208, 209, 210)
    for i in range(4):
        A(f"v_cvt_pk_bf16_f32 v{192+i}, v{200+2*i}, v{201+2*i}")
    A(f"""s_lshl_b32 s32, s24, 10
    s_add_u32 s32, s32, {XN}
    v_lshl_add_u32 v5, v2, 4, s32
    ds_write_b128 v5, v[192:195]
    s_cmp_lg_u32 s24, 1
    s_cbranch_scc1 L_b1
    v_mov_b32 v7, 0
    s_mov_b32 s33, 0""")
    A.label("L_ptag")
    A(f"""buffer_load_dword v6, v7, s[76:79], 0 offen sc1
    s_waitcnt vmcnt(0)
    v_readfirstlane_b32 s32, v6
    s_cmp_lg_u32 s32, 0
    s_cbranch_scc1 L_ptag_ok
    s_sleep 1
    s_add_u32 s33, s33, 1
    s_cmp_lt_u32 s33, {POLL_LIMIT}
    s_cbranch_scc1 L_ptag""")
    A.label("L_ptag_ok")
    A(f"""v_mov_b32 v7, {TAGL}
    ds_write_b32 v7, v6""")
    A.label("L_b1")
    A(f"""s_waitcnt lgkmcnt(0)
    s_barrier                       ; B1
    v_mov_b32 v7, {TAGL}
    ds_read_b32 v6, v7
    s_waitcnt lgkmcnt(0)
    v_readfirstlane_b32 s{TAG}, v6
    s_cmp_lg_u32 s24, 0
    s_cbranch_scc1 L_noq""")
    stamp(A, 1)
    A(f"""v_lshrrev_b32 v5, 2, v4          ; r
    v_lshl_add_u32 v5, v3, 3, v5       ; 8g + r
    v_lshlrev_b32 v5, 5, v5
    v_and_b32 v6, 3, v4
    v_lshl_add_u32 v5, v6, 3, v5
    v_add_u32 v5, {WQL}, v5
    v_and_b32 v6, 7, v4
    v_lshlrev_b32 v6, 10, v6
    v_lshl_add_u32 v6, v3, 4, v6
    v_add_u32 v6, {XN}, v6""")
    QA = 192
    for t in range(16):
        a = QA + 8 * (t % 3)
        A(f"""ds_read_b64_tr_b16 {vr(a,2)}, v5 offset:{1024*t}
        ds_read_b64_tr_b16 {vr(a+2,2)}, v5 offset:{1024*t+128}
        ds_read_b128 {vr(a+4,4)}, v6 offset:{64*t}""")
        if t >= 2:
            tt = t - 2
            aa = QA + 8 * (tt % 3)
            A("s_waitcnt lgkmcnt(6)")
            c = "v[216:219]" if tt > 0 else "0"
            A(f"v_mfma_f32_16x16x32_bf16 v[216:219], {vr(aa,4)}, {vr(aa+4,4)}, {c}")
    for tt in range(14, 16):
        aa = QA + 8 * (tt % 3)
        A(f"s_waitcnt lgkmcnt({3*(15-tt)})")
        A(f"v_mfma_f32_16x16x32_bf16 v[216:219], {vr(aa,4)}, {vr(aa+4,4)}, v[216:219]")
    A(f"""v_mov_b32 v221, s{TAG}
    v_mov_b32 v223, s{TAG}
    v_lshlrev_b32 v5, 14, v4
    v_lshl_add_u32 v5, v3, 4, v5
    s_lshl_b32 s32, s25, 11
    s_lshl_b32 s33, s30, 6
    s_add_u32 s32, s32, s33
    s_add_u32 s32, s32, {WS_QT}
    v_cmp_gt_u32 vcc, 8, v4
    s_nop 3
    v_cvt_pk_bf16_f32 v220, v216, v217
    v_cvt_pk_bf16_f32 v222, v218, v219
    s_and_saveexec_b64 s[36:37], vcc
    buffer_store_dwordx4 v[220:223], v5, s[20:23], s32 offen sc1
    s_mov_b64 exec, s[36:37]""")
    stamp(A, 2)
    A.label("L_noq")
    A("s_barrier                       ; B1b")
    for x in seq[na:na + nb]:
        issue(*x)
    A(f"s_waitcnt vmcnt({4*(na+nb)})")

    def transpose(src, dst):
        for e in range(8):
            sel = 38 if e % 2 == 0 else 39
            for p in range(4):
                A(f"v_perm_b32 v{dst+4*e+p}, v{src+4*(2*p+1)+e//2}, v{src+4*(2*p)+e//2}, s{sel}")
    A("s_barrier                       ; B1c")
    A(f"""s_cmp_lg_u32 s24, 0
    s_cbranch_scc1 L_rest
    s_lshl_b32 s32, s26, 14
    s_lshl_b32 s33, s25, 11
    s_add_u32 s32, s32, s33
    s_add_u32 s32, s32, {WS_QT}
    v_lshlrev_b32 v5, 5, v2""")

    def ldq():
        A(f"""buffer_load_dwordx4 v[192:195], v5, s[20:23], s32 offen sc1
        buffer_load_dwordx4 v[196:199], v5, s[20:23], s32 offen offset:16 sc1""")
    tagged_poll(A, "L_pollq", ldq, [193, 195, 197, 199], 6, 33)
    stamp(A, 3)
    A(f"""v_mov_b32 v193, v194
    v_mov_b32 v194, v196
    v_mov_b32 v195, v198
    v_lshlrev_b32 v5, 4, v2
    v_add_u32 v5, {QL}, v5
    ds_write_b128 v5, v[192:195]""")
    A.label("L_rest")
    for x in seq[na + nb:]:
        issue(*x)
    transpose(RAW, TW)
    transpose(RAW + 32, TW + 32)
    A(f"""v_mov_b32 v{M}, 0xff800000
    v_mov_b32 v{L}, 0""")
    for i in range(32):
        A(f"v_mov_b32 v{ACC+i}, 0")
    A(f"""v_and_b32 v5, 3, v4
    v_lshlrev_b32 v5, 8, v5
    v_lshl_add_u32 v5, v3, 4, v5
    v_add_u32 v5, {QL}, v5
    s_waitcnt lgkmcnt(0)
    s_barrier                       ; B2""")
    for s in range(4):
        A(f"ds_read_b128 {vr(QF+4*s,4)}, v5 offset:{64*s}")
    A("s_waitcnt lgkmcnt(0)")
    stamp(A, 4)

    def tile(slot, do_issue, wK, wV):
        A(f"s_waitcnt vmcnt({wK})")
        for s in range(4):
            A(f"ds_read_b128 {vr(KF+4*s,4)}, v{16+s} offset:{4096*slot}")
        A("s_waitcnt lgkmcnt(0)")
        for s in range(4):
            c = vr(S, 4) if s > 0 else "0"
            A(f"v_mfma_f32_16x16x32_bf16 {vr(S,4)}, {vr(KF+4*s,4)}, {vr(QF+4*s,4)}, {c}")
        if do_issue:
            issue("K", slot)
            A("s_nop 1")
        else:
            A("s_nop 7")
        for i in range(0, 4, 2):
            bf16r2(A, S + i, S + i + 1, T0)
        for i in range(4):
            A(f"v_mul_f32 v{S+i}, {SCALE}, v{S+i}")
        for i in range(0, 4, 2):
            bf16r2(A, S + i, S + i + 1, T0)
        A(f"""v_max3_f32 v{MX}, v{S}, v{S+1}, v{S+2}
        v_max_f32 v{MX}, v{MX}, v{S+3}""")
        reduce_rows(A, MX, T0, "max")
        A(f"""v_max_f32 v{MX}, v{MX}, v{M}
        v_sub_f32 v{T0}, v{M}, v{MX}
        v_mul_f32 v{T0}, {LOG2E}, v{T0}
        v_exp_f32 v{AL}, v{T0}
        v_mul_f32 v{NM}, {NLOG2E}, v{MX}
        v_mov_b32 v{M}, v{MX}""")
        for i in range(4):
            A(f"v_fma_f32 v{S+i}, v{S+i}, s34, v{NM}")
        for i in range(4):
            A(f"v_exp_f32 v{S+i}, v{S+i}")
        A(f"v_mul_f32 v{L}, v{L}, v{AL}")
        A(f"s_waitcnt vmcnt({wV})")
        for t in range(8):
            A(f"ds_read_b64_tr_b16 {vr(VF+2*t,2)}, v{20+t} offset:{8192 + 4096*slot}")
        for i in range(32):
            A(f"v_mul_f32 v{ACC+i}, v{ACC+i}, v{AL}")
        for i in range(4):
            A(f"v_add_f32 v{L}, v{L}, v{S+i}")
        for i in range(2):
            A(f"v_cvt_pk_bf16_f32 v{P+i}, v{S+2*i}, v{S+2*i+1}")
        A("s_waitcnt lgkmcnt(0)")
        A("s_nop 1")
        for t in range(8):
            A(f"v_mfma_f32_16x16x16_bf16 {vr(ACC+4*t,4)}, {vr(VF+2*t,2)}, {vr(P,2)}, {vr(ACC+4*t,4)}")
        if do_issue:
            issue("V", slot)
        else:
            A("s_nop 3")

    A("s_mov_b32 s35, 0")
    A.label("L_a_loop")
    tile(0, True, 12, 12)
    tile(1, True, 12, 12)
    A("""s_add_u32 s35, s35, 1
    s_cmp_lt_u32 s35, 7
    s_cbranch_scc1 L_a_loop""")
    tile(0, False, 12, 8)
    tile(1, False, 4, 0)
    A("s_nop 7")
    A("s_nop 1")
    reduce_rows(A, L, T0, "add")
    stamp(A, 5)
    A(f"""v_lshlrev_b32 v5, 9, v4
    v_lshl_add_u32 v5, v3, 4, v5
    v_add_u32 v5, s31, v5
    v_lshlrev_b32 v6, 3, v4
    v_add_u32 v6, s31, v6
    v_cmp_gt_u32 vcc, 4, v4
    s_and_saveexec_b64 s[36:37], vcc""")
    for t in range(8):
        A(f"ds_write_b128 v5, {vr(ACC+4*t,4)} offset:{64*t}")
    A(f"""ds_write_b64 v6, v[{M}:{L}] offset:2048
    s_mov_b64 exec, s[36:37]
    s_lshl_b32 s32, s28, 9
    v_lshl_add_u32 v5, v2, 3, s32
    v_add_u32 v6, 0x10000, v5
    s_lshl_b32 s32, s28, 3
    v_mov_b32 v7, s32
    v_add_u32 v8, 0x10000, v7
    v_lshlrev_b32 v9, 4, v2             ; 16 l
    v_mov_b32 v30, 0
    v_mov_b32 v25, s{TAG}
    v_mov_b32 v27, s{TAG}
    s_waitcnt lgkmcnt(0)
    s_barrier                       ; B3
    s_cmp_ge_u32 s24, 4
    s_cbranch_scc1 L_nopub""")
    O = 48
    MLr = 64
    for w in range(8):
        A(f"ds_read_b64 {vr(MLr+2*w,2)}, v{7 if w<4 else 8} offset:{16384*(w%4) + 2048}")
    for w in range(8):
        A(f"ds_read_b64 {vr(O+2*w,2)}, v{5 if w<4 else 6} offset:{16384*(w%4)}")
    A(f"""s_lshl_b32 s32, s2, 12
    s_lshl_b32 s33, s28, 10
    s_add_u32 s32, s32, s33
    s_add_u32 s32, s32, {WS_PT}
    s_lshl_b32 s33, s2, 6
    s_lshl_b32 s35, s28, 4
    s_add_u32 s33, s33, s35
    s_add_u32 s33, s33, {WS_PML}
    s_waitcnt lgkmcnt(0)
    v_max3_f32 v20, v{MLr}, v{MLr+2}, v{MLr+4}
    v_max3_f32 v20, v20, v{MLr+6}, v{MLr+8}
    v_max3_f32 v20, v20, v{MLr+10}, v{MLr+12}
    v_max_f32 v20, v20, v{MLr+14}""")
    for w in range(8):
        A(f"""v_sub_f32 v19, v{MLr+2*w}, v20
        v_mul_f32 v19, {LOG2E}, v19
        v_exp_f32 v{80+w}, v19""")
    A(f"""v_mov_b32 v21, s{TAG}
    v_mov_b32 v23, s{TAG}
    v_mul_f32 v24, v{O}, v80
    v_mul_f32 v26, v{O+1}, v80
    v_mul_f32 v22, v{MLr+1}, v80""")
    for w in range(1, 8):
        A(f"""v_fmac_f32 v24, v{O+2*w}, v{80+w}
        v_fmac_f32 v26, v{O+2*w+1}, v{80+w}
        v_fmac_f32 v22, v{MLr+2*w+1}, v{80+w}""")
    A(f"""buffer_store_dwordx4 v[24:27], v9, s[20:23], s32 offen sc1
    s_mov_b64 exec, 1
    buffer_store_dwordx4 v[20:23], v30, s[20:23], s33 offen sc1
    s_mov_b64 exec, -1""")
    A.label("L_nopub")
    A(f"""s_lshl_b32 s32, s26, 5
    s_add_u32 s32, s32, s25
    s_lshl_b32 s33, s32, 6
    s_lshl_b32 s35, s28, 4
    s_add_u32 s33, s33, s35
    s_add_u32 s33, s33, {WS_PML}
    s_lshl_b32 s32, s32, 12
    s_lshl_b32 s35, s28, 10
    s_add_u32 s32, s32, s35
    s_add_u32 s32, s32, {WS_PT}""")
    stamp(A, 6)
    ML = 64

    def ldp():
        for s in range(4):
            A(f"s_add_u32 s35, s32, {32768*s}")
            A(f"buffer_load_dwordx4 {vr(O+4*s,4)}, v9, s[20:23], s35 offen sc1")
        for s in range(4):
            A(f"buffer_load_dwordx4 {vr(ML+4*s,4)}, v30, s[20:23], s33 offen offset:{512*s} sc1")
    tagged_poll(A, "L_poll2", ldp, [O + 1 + 2 * k for k in range(8)] + [ML + 1 + 2 * k for k in range(8)], 6, 36)
    stamp(A, 7)
    A(f"""v_max_f32 v18, v{ML}, v{ML+4}
    v_max3_f32 v18, v18, v{ML+8}, v{ML+12}""")
    for s in range(4):
        A(f"""v_sub_f32 v19, v{ML+4*s}, v18
        v_mul_f32 v19, {LOG2E}, v19
        v_exp_f32 v{20+s}, v19""")
    A(f"""s_nop 0
    v_mul_f32 v19, v{ML+2}, v20
    v_mul_f32 v24, v{O}, v20
    v_mul_f32 v26, v{O+2}, v20""")
    for s in range(1, 4):
        A(f"""v_fmac_f32 v19, v{ML+4*s+2}, v{20+s}
        v_fmac_f32 v24, v{O+4*s}, v{20+s}
        v_fmac_f32 v26, v{O+4*s+2}, v{20+s}""")
    A(f"""v_rcp_f32 v19, v19
    s_lshl_b32 s32, s24, 8
    s_add_u32 s32, s32, {OB}
    v_mul_f32 v24, v24, v19
    v_mul_f32 v26, v26, v19
    v_cvt_pk_bf16_f32 v24, v24, v26
    v_lshl_add_u32 v6, v2, 2, s32
    ds_write_b32 v6, v24
    s_lshr_b32 s33, s24, 2
    s_lshl_b32 s33, s33, 7
    s_add_u32 s32, s32, s33
    v_lshl_add_u32 v6, v3, 4, s32
    s_waitcnt lgkmcnt(0)""")
    for t in range(2):
        A(f"ds_read_b128 {vr(8+4*t,4)}, v6 offset:{64*t}")
    A("s_waitcnt lgkmcnt(0)")
    AC = 96
    for t in range(2):
        for e in range(8):
            c = vr(AC + 4 * e, 4) if t > 0 else "0"
            A(f"v_mfma_f32_16x16x32_bf16 {vr(AC+4*e,4)}, {vr(TW+32*t+4*e,4)}, {vr(8+4*t,4)}, {c}")
    A(f"""s_lshl_b32 s32, s24, 9
    s_add_u32 s32, s32, {YL}
    v_lshl_add_u32 v5, v3, 7, s32
    v_cmp_eq_u32 vcc, 0, v4
    s_nop 4""")
    for r in range(4):
        for e in range(8):
            A(f"v_mov_b32 v{48+8*r+e}, v{AC+4*e+r}")
    A("s_and_saveexec_b64 s[36:37], vcc")
    for k in range(8):
        A(f"ds_write_b128 v5, {vr(48+4*k,4)} offset:{16*k}")
    A(f"""s_mov_b64 exec, s[36:37]
    s_waitcnt lgkmcnt(0)
    s_barrier                       ; B4
    s_cmp_lg_u32 s24, 0
    s_cbranch_scc1 L_final
    v_lshlrev_b32 v5, 3, v2
    v_add_u32 v5, {YL}, v5""")
    for w in range(8):
        A(f"ds_read_b64 v[{48+2*w}:{49+2*w}], v5 offset:{512*w}")
    A(f"""s_lshl_b32 s32, s26, 15
    s_lshl_b32 s33, s25, 12
    s_add_u32 s32, s32, s33
    s_lshl_b32 s33, s27, 10
    s_add_u32 s32, s32, s33
    s_add_u32 s32, s32, {WS_YT}
    v_lshlrev_b32 v5, 4, v2
    s_waitcnt lgkmcnt(0)
    v_add_f32 v24, v48, v50
    v_add_f32 v26, v49, v51""")
    for w in range(2, 8):
        A(f"""v_add_f32 v24, v24, v{48+2*w}
        v_add_f32 v26, v26, v{49+2*w}""")
    A("buffer_store_dwordx4 v[24:27], v5, s[20:23], s32 offen sc1")
    stamp(A, 8)

    A.label("L_final")
    A(f"""v_and_b32 v5, 255, v0
    v_lshlrev_b32 v5, 4, v5
    v_lshrrev_b32 v6, 8, v0            ; half
    v_lshl_add_u32 v9, v6, 14, v5      ; half*4*4096 + 16*(t%256)
    s_lshl_b32 s31, s26, 15
    s_add_u32 s31, s31, {WS_YT}""")

    def ldy():
        for k in range(4):
            A(f"s_add_u32 s32, s31, {4096*k}")
            A(f"buffer_load_dwordx4 {vr(16+4*k,4)}, v9, s[20:23], s32 offen sc1")
    tagged_poll(A, "L_poll3", ldy, [17 + 2 * k for k in range(8)], 10, 33)
    stamp(A, 9)
    A(f"""v_lshrrev_b32 v5, 1, v5
    v_lshl_add_u32 v5, v6, 11, v5
    v_add_f32 v16, v16, v20
    v_add_f32 v17, v18, v22
    v_add_f32 v24, v24, v28
    v_add_f32 v25, v26, v30
    v_add_f32 v16, v16, v24
    v_add_f32 v17, v17, v25
    ds_write_b64 v5, v[16:17] offset:{HS}
    s_waitcnt lgkmcnt(0)
    s_barrier                       ; B5
    v_lshlrev_b32 v5, 5, v2""")
    for hg in range(2):
        A(f"ds_read_b128 {vr(16+8*hg,4)}, v5 offset:{HS+2048*hg}")
        A(f"ds_read_b128 {vr(20+8*hg,4)}, v5 offset:{HS+2048*hg+16}")
    unpack8(A, XR, 48)
    A("s_waitcnt lgkmcnt(0)")
    stamp(A, 10)
    for i in range(8):
        A(f"v_add_f32 v{16+i}, v{16+i}, v{24+i}")
    for i in range(0, 8, 2):
        bf16r2(A, 16 + i, 17 + i, 8)
    for i in range(8):
        A(f"v_add_f32 v{16+i}, v{16+i}, v{48+i}")
    for i in range(0, 8, 2):
        bf16r2(A, 16 + i, 17 + i, 8)
    A(f"""ds_write_b128 v5, v[16:19] offset:{HB}
    ds_write_b128 v5, v[20:23] offset:{HB+16}""")
    layernorm8(A, 16, 8, 9, 10)
    layernorm8(A, 16, 8, 9, 10)
    A(f"""s_and_b32 s30, s2, 31
    s_lshl_b32 s30, s30, 1
    s_lshr_b32 s31, s24, 2
    s_add_u32 s30, s30, s31
    s_nop 1""")
    for e in range(8):
        A(f"v_readlane_b32 s{80+e}, v{16+e}, s30")
    for i in range(7):
        A(f"v_lshlrev_b32 v{W1R+i}, 16, v{W1R+i}")
        A(f"v_lshlrev_b32 v{B1R+i}, 16, v{B1R+i}")
        A(f"v_lshlrev_b32 v{W2R+i}, 16, v{W2R+i}")
    stamp(A, 13)
    c1 = -2 * 0.7978845608028654 * 1.4426950408889634
    c3 = c1 * 0.044715
    A(f"""v_mov_b32 v56, {f32hex(c1)}
    v_mov_b32 v57, {f32hex(c1)}
    v_mov_b32 v58, {f32hex(c3)}
    v_mov_b32 v59, {f32hex(c3)}
    v_mov_b32 v60, 1.0
    v_mov_b32 v61, 1.0""")
    MA = 96

    def bc(r):
        return (f"v[{r & ~1}:{(r & ~1)+1}]", r & 1)
    k = 0
    for i in range(7):
        w1, s1 = bc(W1R + i)
        b1, s2 = bc(B1R + i)
        w2, s3 = bc(W2R + i)
        for ep in range(4):
            u = 8 + 6 * (k % 2)
            z = u + 2
            y = u + 4
            k += 1
            A(f"""v_pk_fma_f32 v[{u}:{u+1}], s[{80+2*ep}:{81+2*ep}], {w1}, {b1} op_sel:[0,{s1},{s2}] op_sel_hi:[1,{s1},{s2}]
            v_pk_mul_f32 v[{z}:{z+1}], v[{u}:{u+1}], v[{u}:{u+1}]
            v_pk_fma_f32 v[{z}:{z+1}], v[{z}:{z+1}], v[58:59], v[56:57]
            v_pk_mul_f32 v[{z}:{z+1}], v[{z}:{z+1}], v[{u}:{u+1}]
            v_pk_mul_f32 v[{y}:{y+1}], v[{u}:{u+1}], {w2} op_sel:[0,{s3}] op_sel_hi:[1,{s3}]
            v_exp_f32 v{z}, v{z}
            v_exp_f32 v{z+1}, v{z+1}
            s_nop 0
            v_pk_add_f32 v[{z}:{z+1}], v[{z}:{z+1}], v[60:61]
            v_rcp_f32 v{z}, v{z}
            v_rcp_f32 v{z+1}, v{z+1}
            s_nop 0""")
            if i == 0:
                A(f"v_pk_mul_f32 v[{MA+2*ep}:{MA+2*ep+1}], v[{y}:{y+1}], v[{z}:{z+1}]")
            else:
                A(f"v_pk_fma_f32 v[{MA+2*ep}:{MA+2*ep+1}], v[{y}:{y+1}], v[{z}:{z+1}], v[{MA+2*ep}:{MA+2*ep+1}]")
    stamp(A, 14)
    A("s_nop 1")
    for ctl in ["quad_perm:[1,0,3,2]", "quad_perm:[2,3,0,1]", "row_half_mirror", "row_mirror"]:
        for e in range(8):
            A(f"v_add_f32_dpp v{MA+e}, v{MA+e}, v{MA+e} {ctl} row_mask:0xf bank_mask:0xf")
    A(f"""v_lshrrev_b32 v8, 4, v0
    v_lshlrev_b32 v8, 5, v8
    v_cmp_eq_u32 vcc, 0, v4
    s_and_saveexec_b64 s[34:35], vcc""")
    for k in range(2):
        A(f"ds_write_b128 v8, {vr(MA+4*k,4)} offset:{RS+16*k}")
    A(f"""s_mov_b64 exec, s[34:35]
    s_waitcnt lgkmcnt(0)
    s_barrier                       ; B6""")
    stamp(A, 11)
    if STAMPS:
        A(f"""s_lshl_b32 s30, s2, 9
        s_lshl_b32 s31, s24, 6
        s_add_u32 s30, s30, s31
        s_add_u32 s30, s30, {WS_ST}
        v_lshlrev_b32 v8, 2, v2
        v_cmp_gt_u32 vcc, 16, v2
        s_and_saveexec_b64 s[34:35], vcc
        buffer_store_dword v{STV}, v8, s[20:23], s30 offen
        s_mov_b64 exec, s[34:35]""")
    A(f"""v_cmp_gt_u32 vcc, 16, v0
    s_and_saveexec_b64 s[34:35], vcc
    s_cbranch_execz L_done
    v_lshrrev_b32 v8, 3, v0
    v_lshlrev_b32 v8, 9, v8
    v_and_b32 v9, 7, v0
    v_lshl_add_u32 v8, v9, 2, v8""")
    for k in range(16):
        A(f"ds_read_b32 v{16+k}, v8 offset:{RS+32*k}")
    A(f"""s_and_b32 s30, s2, 31
    s_lshl_b32 s30, s30, 6
    v_lshlrev_b32 v9, 2, v0
    v_add_u32 v9, s30, v9
    ds_read_b32 v10, v9 offset:{HB}
    s_waitcnt lgkmcnt(0)""")
    for k in range(1, 16):
        A(f"v_add_f32 v16, v16, v{16+k}")
    bf16r1(A, 16)
    A(f"""v_lshlrev_b32 v{B2R}, 16, v{B2R}
    v_add_f32 v16, v16, v{B2R}""")
    bf16r1(A, 16)
    A(f"""v_add_f32 v16, v16, v10
    v_cvt_pk_bf16_f32 v16, v16, v16
    v_lshlrev_b32 v8, 1, v0
    s_lshr_b32 s30, s30, 1
    s_lshl_b32 s31, s26, 10
    s_add_u32 s30, s30, s31
    buffer_store_short v16, v8, s[72:75], s30 offen""")
    A.label("L_done")
    A("s_endpgm")
    return name, kdesc(name, 256)


def main():
    global STAMPS
    out = sys.argv[1] if len(sys.argv) > 1 else f"cdna_kernels/{NAME}.s"
    for a in sys.argv[2:]:
        if a == "stamps":
            STAMPS = True
        elif "=" in a:
            k, v = a.split("=")
            OPT[k] = v
    A = Asm()
    n, d = k_fused(A)
    txt = HEADER + f"; @launch grid=(256,1,1) block=(512,1,1) lds={LDS_BYTES}\n"
    txt += '.amdgcn_target "amdgcn-amd-amdhsa--gfx950"\n.text\n'
    txt += A.text()
    txt += '.section .rodata,"a"\n.p2align 6\n' + d
    open(out, "w").write(txt)
    print(LDS_BYTES)


if __name__ == "__main__":
    main()
```

```python
import sys
import struct
from gen import Asm, vr, sr, srd, allreduce, reduce_rows, bf16r1, bf16r2, layernorm8, unpack8, kernel_begin, kdesc, HEADER, NAME, SCALE, LOG2E, NLOG2E

WS_QT = 0x0
WS_PT = 0x100000
WS_PML = 0x200000
WS_YT = 0x300000
WS_ST = 0x380000
WS_BYTES = 0x400000

QL = 131072
XN = QL + 1024
WQL = XN + 8192
OB = WQL + 16384
YL = OB + 2048
TAGL = YL + 4096
LDS_BYTES = TAGL + 16
HS = 0
HB = 8192
RS = 16384
HN = 12288

POLL_LIMIT = 1000000
TAG = 43

QF, KF, VF, S, P, M, L = 32, 48, 64, 80, 84, 86, 87
MX, T0, AL, NM = 28, 29, 30, 31
ACC = 96
TW = 128
RAW = 128
TW0, TW1 = 96, 192
W1R, B1R, W2R, XR, B2R, STV = 224, 232, 240, 250, 254, 255

STAMPS = False
OPT = {"na": "1", "nb": "2"}


def f32hex(x):
    return "0x%08x" % struct.unpack("<I", struct.pack("<f", x))[0]


def stamp(A, idx):
    if not STAMPS:
        return
    A(f"""s_memrealtime s[98:99]
    s_waitcnt lgkmcnt(0)
    v_writelane_b32 v{STV}, s98, {idx}""")


def tagged_poll(A, label, loads, tagregs, vt, scnt):
    A(f"s_mov_b32 s{scnt}, 0")
    A.label(label)
    loads()
    A("s_waitcnt vmcnt(0)")
    A(f"v_xor_b32 v{vt}, s{TAG}, v{tagregs[0]}")
    for t in tagregs[1:]:
        A(f"v_xor_b32 v{vt+1}, s{TAG}, v{t}")
        A(f"v_or_b32 v{vt}, v{vt}, v{vt+1}")
    A(f"""v_cmp_ne_u32 vcc, 0, v{vt}
    s_cmp_eq_u64 vcc, 0
    s_cbranch_scc1 {label}_ok
    s_sleep 1
    s_add_u32 s{scnt}, s{scnt}, 1
    s_cmp_lt_u32 s{scnt}, {POLL_LIMIT}
    s_cbranch_scc1 {label}""")
    A.label(label + "_ok")


def k_fused(A):
    name = NAME + "_kernel"
    NT = " nt"
    na, nb = int(OPT["na"]), int(OPT["nb"])
    kernel_begin(A, name)
    A(f"""s_cmp_ge_u32 s2, 256
    s_cbranch_scc1 L_done
    s_load_dwordx16 s[80:95], s[0:1], 0
    s_load_dwordx8 s[4:11], s[0:1], 64
    s_load_dwordx2 s[96:97], s[0:1], 96
    v_lshrrev_b32 v1, 6, v0
    v_and_b32 v2, 63, v0
    s_nop 0
    v_readfirstlane_b32 s24, v1
    s_and_b32 s25, s2, 7               ; hkv
    s_lshr_b32 s26, s2, 5              ; b
    s_bfe_u32 s27, s2, 0x20003         ; split
    v_lshrrev_b32 v3, 4, v2            ; g
    v_and_b32 v4, 15, v2               ; i / j
    s_and_b32 s28, s24, 3
    s_waitcnt lgkmcnt(0)""")
    srd(A, 76, 10, 256)
    if STAMPS:
        A(f"v_mov_b32 v{STV}, 0")
    stamp(A, 0)
    A(f"""s_or_b32 s30, s2, s24
    s_cmp_lg_u32 s30, 0
    s_cbranch_scc1 L_notag
    v_mov_b32 v7, 0
    s_memrealtime s[98:99]
    s_waitcnt lgkmcnt(0)
    s_or_b32 s98, s98, 1
    v_mov_b32 v6, s98
    s_mov_b64 exec, 1
    buffer_store_dword v6, v7, s[76:79], 0 offen sc1
    s_mov_b64 exec, -1""")
    A.label("L_notag")
    srd(A, 48, 86, 4194304)
    srd(A, 44, 80, 8192)
    A(f"""s_lshr_b32 s30, s2, 3
    s_cmp_lg_u32 s24, 0
    s_cbranch_scc1 L_nodma
    s_lshl_b32 s31, s25, 10
    s_lshl_b32 s33, s30, 5
    s_add_u32 s33, s33, s31
    v_lshrrev_b32 v6, 1, v2
    v_lshlrev_b32 v6, 13, v6
    v_and_b32 v7, 1, v2
    v_lshl_add_u32 v6, v7, 4, v6""")
    for i in range(16):
        A(f"""s_mov_b32 m0, {WQL + 1024*i}
        s_nop 0
        buffer_load_dwordx4 v6, s[48:51], s33 offen lds
        s_add_u32 s33, s33, 262144""")
    A.label("L_nodma")
    A(f"""s_lshl_b32 s29, s24, 10
    v_lshlrev_b32 v5, 4, v2
    buffer_load_dwordx4 v[192:195], v5, s[44:47], s29 offen""")
    srd(A, 12, 82, 134217728)
    srd(A, 16, 84, 134217728)
    srd(A, 20, 96, WS_BYTES)
    srd(A, 52, 88, 4194304)
    srd(A, 56, 92, 3584)
    srd(A, 60, 94, 3584)
    srd(A, 64, 4, 3584)
    srd(A, 68, 6, 2)
    srd(A, 72, 8, 8192)
    A(f"""s_lshl_b32 s31, s26, 3
    s_add_u32 s31, s31, s25            ; pair
    s_lshl_b32 s29, s31, 21
    s_lshl_b32 s31, s27, 19
    s_add_u32 s29, s29, s31
    s_lshl_b32 s31, s24, 12
    s_add_u32 s29, s29, s31
    s_mov_b32 s40, s29                 ; V
    s_lshl_b32 s31, s24, 14
    """)
    for i in range(4):
        A(f"""v_add_u32 v5, {4*i}, v3
        v_xor_b32 v5, v5, v4
        v_lshlrev_b32 v5, 4, v5
        v_lshl_add_u32 v{10+i}, v3, 8, v5""")
    for i in range(2):
        A(f"""v_add_u32 v5, {4*i}, v3
        v_lshlrev_b32 v5, 1, v5
        v_xor_b32 v5, v5, v4
        v_lshlrev_b32 v5, 4, v5
        v_lshl_add_u32 v{14+i}, v3, 8, v5""")

    def issue(kind, slot):
        sreg = 29 if kind == "K" else 40
        sd = 12 if kind == "K" else 16
        lds = (0 if kind == "K" else 8192) + 4096 * slot
        A(f"s_add_u32 m0, s31, {lds}")
        A("s_nop 0")
        for i in range(4):
            vo = (10 + i) if kind == "K" else (14 + i % 2)
            A(f"buffer_load_dwordx4 v{vo}, {sr(sd,4)}, s{sreg} offen offset:{1024*i}{NT} lds")
        A(f"s_add_u32 s{sreg}, s{sreg}, 32768")

    seq = [("K", 0), ("V", 0), ("K", 1), ("V", 1)]
    for x in seq[:na]:
        issue(*x)
    A(f"""v_xor_b32 v5, v3, v4
    v_lshlrev_b32 v5, 4, v5
    v_lshl_add_u32 v5, v4, 8, v5
    v_add_u32 v5, s31, v5""")
    for s in range(4):
        A(f"v_xor_b32 v{16+s}, {64*s}, v5")
    A(f"""v_lshrrev_b32 v5, 2, v4          ; r
    v_lshl_add_u32 v5, v3, 2, v5       ; rho
    v_and_b32 v6, 7, v5
    v_lshlrev_b32 v6, 5, v6
    v_lshl_add_u32 v6, v5, 8, v6
    v_and_b32 v7, 3, v4
    v_lshl_add_u32 v6, v7, 3, v6
    v_add_u32 v6, s31, v6""")
    for t in range(8):
        A(f"v_xor_b32 v{20+t}, {32*t}, v6")
    A(f"""s_mov_b32 s34, {LOG2E}
    s_mov_b32 s38, 0x05040100
    s_mov_b32 s39, 0x07060302
    s_waitcnt vmcnt({4*na})""")
    stamp(A, 12)
    unpack8(A, 192, 200)
    layernorm8(A, 200, 208, 209, 210)
    for i in range(4):
        A(f"v_cvt_pk_bf16_f32 v{192+i}, v{200+2*i}, v{201+2*i}")
    A(f"""s_lshl_b32 s32, s24, 10
    s_add_u32 s32, s32, {XN}
    v_lshl_add_u32 v5, v2, 4, s32
    ds_write_b128 v5, v[192:195]
    s_cmp_lg_u32 s24, 1
    s_cbranch_scc1 L_b1
    v_mov_b32 v7, 0
    s_mov_b32 s33, 0""")
    A.label("L_ptag")
    A(f"""buffer_load_dword v6, v7, s[76:79], 0 offen sc1
    s_waitcnt vmcnt(0)
    v_readfirstlane_b32 s32, v6
    s_cmp_lg_u32 s32, 0
    s_cbranch_scc1 L_ptag_ok
    s_sleep 1
    s_add_u32 s33, s33, 1
    s_cmp_lt_u32 s33, {POLL_LIMIT}
    s_cbranch_scc1 L_ptag""")
    A.label("L_ptag_ok")
    A(f"""v_mov_b32 v7, {TAGL}
    ds_write_b32 v7, v6""")
    A.label("L_b1")
    A(f"""s_waitcnt lgkmcnt(0)
    s_barrier                       ; B1
    v_mov_b32 v7, {TAGL}
    ds_read_b32 v6, v7
    s_waitcnt lgkmcnt(0)
    v_readfirstlane_b32 s{TAG}, v6
    s_cmp_lg_u32 s24, 0
    s_cbranch_scc1 L_noq""")
    stamp(A, 1)
    A(f"""v_lshrrev_b32 v5, 2, v4          ; r
    v_lshl_add_u32 v5, v3, 3, v5       ; 8g + r
    v_lshlrev_b32 v5, 5, v5
    v_and_b32 v6, 3, v4
    v_lshl_add_u32 v5, v6, 3, v5
    v_add_u32 v5, {WQL}, v5
    v_and_b32 v6, 7, v4
    v_lshlrev_b32 v6, 10, v6
    v_lshl_add_u32 v6, v3, 4, v6
    v_add_u32 v6, {XN}, v6""")
    QA = 192
    for t in range(16):
        a = QA + 8 * (t % 3)
        A(f"""ds_read_b64_tr_b16 {vr(a,2)}, v5 offset:{1024*t}
        ds_read_b64_tr_b16 {vr(a+2,2)}, v5 offset:{1024*t+128}
        ds_read_b128 {vr(a+4,4)}, v6 offset:{64*t}""")
        if t >= 2:
            tt = t - 2
            aa = QA + 8 * (tt % 3)
            A("s_waitcnt lgkmcnt(6)")
            c = "v[216:219]" if tt > 0 else "0"
            A(f"v_mfma_f32_16x16x32_bf16 v[216:219], {vr(aa,4)}, {vr(aa+4,4)}, {c}")
    for tt in range(14, 16):
        aa = QA + 8 * (tt % 3)
        A(f"s_waitcnt lgkmcnt({3*(15-tt)})")
        A(f"v_mfma_f32_16x16x32_bf16 v[216:219], {vr(aa,4)}, {vr(aa+4,4)}, v[216:219]")
    A(f"""v_mov_b32 v221, s{TAG}
    v_mov_b32 v223, s{TAG}
    v_lshlrev_b32 v5, 14, v4
    v_lshl_add_u32 v5, v3, 4, v5
    s_lshl_b32 s32, s25, 11
    s_lshl_b32 s33, s30, 6
    s_add_u32 s32, s32, s33
    s_add_u32 s32, s32, {WS_QT}
    v_cmp_gt_u32 vcc, 8, v4
    s_nop 3
    v_cvt_pk_bf16_f32 v220, v216, v217
    v_cvt_pk_bf16_f32 v222, v218, v219
    s_and_saveexec_b64 s[36:37], vcc
    buffer_store_dwordx4 v[220:223], v5, s[20:23], s32 offen sc1
    s_mov_b64 exec, s[36:37]""")
    stamp(A, 2)
    A.label("L_noq")
    A("s_barrier                       ; B1b")
    for x in seq[na:na + nb]:
        issue(*x)

    def transpose(src, dst):
        for e in range(8):
            sel = 38 if e % 2 == 0 else 39
            for p in range(4):
                A(f"v_perm_b32 v{dst+4*e+p}, v{src+4*(2*p+1)+e//2}, v{src+4*(2*p)+e//2}, s{sel}")
    A("s_barrier                       ; B1c")
    A(f"""s_cmp_lg_u32 s24, 0
    s_cbranch_scc1 L_rest
    s_lshl_b32 s32, s26, 14
    s_lshl_b32 s33, s25, 11
    s_add_u32 s32, s32, s33
    s_add_u32 s32, s32, {WS_QT}
    v_lshlrev_b32 v5, 5, v2""")

    def ldq():
        A(f"""buffer_load_dwordx4 v[192:195], v5, s[20:23], s32 offen sc1
        buffer_load_dwordx4 v[196:199], v5, s[20:23], s32 offen offset:16 sc1""")
    if OPT.get("noq", "0") == "0":
        tagged_poll(A, "L_pollq", ldq, [193, 195, 197, 199], 6, 33)
    stamp(A, 3)
    A(f"""v_mov_b32 v193, v194
    v_mov_b32 v194, v196
    v_mov_b32 v195, v198
    v_lshlrev_b32 v5, 4, v2
    v_add_u32 v5, {QL}, v5
    ds_write_b128 v5, v[192:195]""")
    A.label("L_rest")
    for x in seq[na + nb:]:
        issue(*x)
    A(f"""v_mov_b32 v{M}, 0xff800000
    v_mov_b32 v{L}, 0""")
    for i in range(32):
        A(f"v_mov_b32 v{ACC+i}, 0")
    A(f"""v_and_b32 v5, 3, v4
    v_lshlrev_b32 v5, 8, v5
    v_lshl_add_u32 v5, v3, 4, v5
    v_add_u32 v5, {QL}, v5
    s_waitcnt lgkmcnt(0)
    s_barrier                       ; B2""")
    for s in range(4):
        A(f"ds_read_b128 {vr(QF+4*s,4)}, v5 offset:{64*s}")
    A("s_waitcnt lgkmcnt(0)")
    stamp(A, 4)
    A(f"""v_lshlrev_b32 v5, 13, v3          ; 8g*1024
    v_lshl_add_u32 v5, v4, 4, v5
    s_lshl_b32 s35, s25, 2
    s_add_u32 s35, s35, s28
    s_lshl_b32 s35, s35, 17
    s_lshr_b32 s32, s24, 2
    s_lshl_b32 s32, s32, 16
    s_add_u32 s35, s35, s32
    s_lshl_b32 s32, s27, 8
    s_add_u32 s35, s35, s32""")
    for t in range(2):
        for r in range(8):
            A(f"s_add_u32 s32, s35, {(32*t + r)*1024}")
            A(f"buffer_load_dwordx4 {vr(RAW+32*t+4*r,4)}, v5, s[52:55], s32 offen")
    A("""v_and_b32 v6, 255, v0
    v_lshlrev_b32 v6, 1, v6""")
    for i in range(7):
        A(f"buffer_load_ushort v{W1R+i}, v6, s[56:59], 0 offen offset:{512*i}")
        A(f"buffer_load_ushort v{B1R+i}, v6, s[60:63], 0 offen offset:{512*i}")
        A(f"buffer_load_ushort v{W2R+i}, v6, s[64:67], 0 offen offset:{512*i}")
    A(f"""v_mov_b32 v7, 0
    buffer_load_ushort v{B2R}, v7, s[68:71], 0 offen
    v_lshlrev_b32 v6, 4, v2
    s_lshl_b32 s42, s26, 10
    buffer_load_dwordx4 {vr(XR,4)}, v6, s[44:47], s42 offen""")

    def tile(slot, do_issue, wK, wV):
        strip = OPT.get("strip", "0")
        if strip == "1":
            A(f"s_waitcnt vmcnt({wK})")
            if do_issue:
                issue("K", slot)
            A(f"s_waitcnt vmcnt({wV})")
            if do_issue:
                issue("V", slot)
            return
        if strip == "2":
            A(f"s_waitcnt vmcnt({wK})")
            for s in range(4):
                A(f"ds_read_b128 {vr(KF+4*s,4)}, v{16+s} offset:{4096*slot}")
            A("s_waitcnt lgkmcnt(0)")
            for s in range(4):
                c = vr(S, 4) if s > 0 else "0"
                A(f"v_mfma_f32_16x16x32_bf16 {vr(S,4)}, {vr(KF+4*s,4)}, {vr(QF+4*s,4)}, {c}")
            if do_issue:
                issue("K", slot)
            A(f"s_waitcnt vmcnt({wV})")
            for t in range(8):
                A(f"ds_read_b64_tr_b16 {vr(VF+2*t,2)}, v{20+t} offset:{8192 + 4096*slot}")
            A("s_waitcnt lgkmcnt(0)")
            A("s_nop 1")
            for t in range(8):
                A(f"v_mfma_f32_16x16x16_bf16 {vr(ACC+4*t,4)}, {vr(VF+2*t,2)}, {vr(P,2)}, {vr(ACC+4*t,4)}")
            if do_issue:
                issue("V", slot)
            return
        A(f"s_waitcnt vmcnt({wK})")
        for s in range(4):
            A(f"ds_read_b128 {vr(KF+4*s,4)}, v{16+s} offset:{4096*slot}")
        A("s_waitcnt lgkmcnt(0)")
        for s in range(4):
            c = vr(S, 4) if s > 0 else "0"
            A(f"v_mfma_f32_16x16x32_bf16 {vr(S,4)}, {vr(KF+4*s,4)}, {vr(QF+4*s,4)}, {c}")
        if do_issue:
            issue("K", slot)
            A("s_nop 1")
        else:
            A("s_nop 7")
        for i in range(0, 4, 2):
            bf16r2(A, S + i, S + i + 1, T0)
        for i in range(4):
            A(f"v_mul_f32 v{S+i}, {SCALE}, v{S+i}")
        for i in range(0, 4, 2):
            bf16r2(A, S + i, S + i + 1, T0)
        A(f"""v_max3_f32 v{MX}, v{S}, v{S+1}, v{S+2}
        v_max_f32 v{MX}, v{MX}, v{S+3}""")
        reduce_rows(A, MX, T0, "max")
        A(f"""v_max_f32 v{MX}, v{MX}, v{M}
        v_sub_f32 v{T0}, v{M}, v{MX}
        v_mul_f32 v{T0}, {LOG2E}, v{T0}
        v_exp_f32 v{AL}, v{T0}
        v_mul_f32 v{NM}, {NLOG2E}, v{MX}
        v_mov_b32 v{M}, v{MX}""")
        for i in range(4):
            A(f"v_fma_f32 v{S+i}, v{S+i}, s34, v{NM}")
        for i in range(4):
            A(f"v_exp_f32 v{S+i}, v{S+i}")
        A(f"v_mul_f32 v{L}, v{L}, v{AL}")
        A(f"s_waitcnt vmcnt({wV})")
        for t in range(8):
            A(f"ds_read_b64_tr_b16 {vr(VF+2*t,2)}, v{20+t} offset:{8192 + 4096*slot}")
        for i in range(32):
            A(f"v_mul_f32 v{ACC+i}, v{ACC+i}, v{AL}")
        for i in range(4):
            A(f"v_add_f32 v{L}, v{L}, v{S+i}")
        for i in range(2):
            A(f"v_cvt_pk_bf16_f32 v{P+i}, v{S+2*i}, v{S+2*i+1}")
        A("s_waitcnt lgkmcnt(0)")
        A("s_nop 1")
        for t in range(8):
            A(f"v_mfma_f32_16x16x16_bf16 {vr(ACC+4*t,4)}, {vr(VF+2*t,2)}, {vr(P,2)}, {vr(ACC+4*t,4)}")
        if do_issue:
            issue("V", slot)
        else:
            A("s_nop 3")

    tile(0, True, 51, 51)
    tile(1, True, 51, 51)
    A("s_mov_b32 s35, 0")
    A.label("L_a_loop")
    tile(0, True, 12, 12)
    tile(1, True, 12, 12)
    A("""s_add_u32 s35, s35, 1
    s_cmp_lt_u32 s35, 6
    s_cbranch_scc1 L_a_loop""")
    tile(0, False, 12, 8)
    tile(1, False, 4, 0)
    A("s_nop 7")
    A("s_nop 1")
    reduce_rows(A, L, T0, "add")
    stamp(A, 5)
    A(f"""v_lshlrev_b32 v5, 9, v4
    v_lshl_add_u32 v5, v3, 4, v5
    v_add_u32 v5, s31, v5
    v_lshlrev_b32 v6, 3, v4
    v_add_u32 v6, s31, v6
    v_cmp_gt_u32 vcc, 4, v4
    s_and_saveexec_b64 s[36:37], vcc""")
    for t in range(8):
        A(f"ds_write_b128 v5, {vr(ACC+4*t,4)} offset:{64*t}")
    A(f"""ds_write_b64 v6, v[{M}:{L}] offset:2048
    s_mov_b64 exec, s[36:37]
    s_lshl_b32 s32, s28, 9
    v_lshl_add_u32 v5, v2, 3, s32
    v_add_u32 v6, 0x10000, v5
    s_lshl_b32 s32, s28, 3
    v_mov_b32 v7, s32
    v_add_u32 v8, 0x10000, v7
    v_lshlrev_b32 v9, 4, v2             ; 16 l
    v_mov_b32 v30, 0
    v_mov_b32 v25, s{TAG}
    v_mov_b32 v27, s{TAG}
    s_waitcnt lgkmcnt(0)
    s_barrier                       ; B3
    s_cmp_ge_u32 s24, 4
    s_cbranch_scc1 L_nopub""")
    O = 48
    MLr = 64
    for w in range(8):
        A(f"ds_read_b64 {vr(MLr+2*w,2)}, v{7 if w<4 else 8} offset:{16384*(w%4) + 2048}")
    for w in range(8):
        A(f"ds_read_b64 {vr(O+2*w,2)}, v{5 if w<4 else 6} offset:{16384*(w%4)}")
    A(f"""s_lshl_b32 s32, s2, 12
    s_lshl_b32 s33, s28, 10
    s_add_u32 s32, s32, s33
    s_add_u32 s32, s32, {WS_PT}
    s_lshl_b32 s33, s2, 6
    s_lshl_b32 s35, s28, 4
    s_add_u32 s33, s33, s35
    s_add_u32 s33, s33, {WS_PML}
    s_waitcnt lgkmcnt(0)
    v_max3_f32 v20, v{MLr}, v{MLr+2}, v{MLr+4}
    v_max3_f32 v20, v20, v{MLr+6}, v{MLr+8}
    v_max3_f32 v20, v20, v{MLr+10}, v{MLr+12}
    v_max_f32 v20, v20, v{MLr+14}""")
    for w in range(8):
        A(f"""v_sub_f32 v19, v{MLr+2*w}, v20
        v_mul_f32 v19, {LOG2E}, v19
        v_exp_f32 v{80+w}, v19""")
    A(f"""v_mov_b32 v21, s{TAG}
    v_mov_b32 v23, s{TAG}
    v_mul_f32 v24, v{O}, v80
    v_mul_f32 v26, v{O+1}, v80
    v_mul_f32 v22, v{MLr+1}, v80""")
    for w in range(1, 8):
        A(f"""v_fmac_f32 v24, v{O+2*w}, v{80+w}
        v_fmac_f32 v26, v{O+2*w+1}, v{80+w}
        v_fmac_f32 v22, v{MLr+2*w+1}, v{80+w}""")
    A(f"""buffer_store_dwordx4 v[24:27], v9, s[20:23], s32 offen sc1
    s_mov_b64 exec, 1
    buffer_store_dwordx4 v[20:23], v30, s[20:23], s33 offen sc1
    s_mov_b64 exec, -1""")
    A.label("L_nopub")
    A(f"""s_lshl_b32 s32, s26, 5
    s_add_u32 s32, s32, s25
    s_lshl_b32 s33, s32, 6
    s_lshl_b32 s35, s28, 4
    s_add_u32 s33, s33, s35
    s_add_u32 s33, s33, {WS_PML}
    s_lshl_b32 s32, s32, 12
    s_lshl_b32 s35, s28, 10
    s_add_u32 s32, s32, s35
    s_add_u32 s32, s32, {WS_PT}""")
    transpose(RAW, TW0)
    transpose(RAW + 32, TW1)
    stamp(A, 6)
    ML = 64

    def ldp():
        for s in range(4):
            A(f"s_add_u32 s35, s32, {32768*s}")
            A(f"buffer_load_dwordx4 {vr(O+4*s,4)}, v9, s[20:23], s35 offen sc1")
        for s in range(4):
            A(f"buffer_load_dwordx4 {vr(ML+4*s,4)}, v30, s[20:23], s33 offen offset:{512*s} sc1")
    tagged_poll(A, "L_poll2", ldp, [O + 1 + 2 * k for k in range(8)] + [ML + 1 + 2 * k for k in range(8)], 6, 36)
    stamp(A, 7)
    A(f"""v_max_f32 v18, v{ML}, v{ML+4}
    v_max3_f32 v18, v18, v{ML+8}, v{ML+12}""")
    for s in range(4):
        A(f"""v_sub_f32 v19, v{ML+4*s}, v18
        v_mul_f32 v19, {LOG2E}, v19
        v_exp_f32 v{20+s}, v19""")
    A(f"""s_nop 0
    v_mul_f32 v19, v{ML+2}, v20
    v_mul_f32 v24, v{O}, v20
    v_mul_f32 v26, v{O+2}, v20""")
    for s in range(1, 4):
        A(f"""v_fmac_f32 v19, v{ML+4*s+2}, v{20+s}
        v_fmac_f32 v24, v{O+4*s}, v{20+s}
        v_fmac_f32 v26, v{O+4*s+2}, v{20+s}""")
    A(f"""v_rcp_f32 v19, v19
    s_lshl_b32 s32, s24, 8
    s_add_u32 s32, s32, {OB}
    v_mul_f32 v24, v24, v19
    v_mul_f32 v26, v26, v19
    v_cvt_pk_bf16_f32 v24, v24, v26
    v_lshl_add_u32 v6, v2, 2, s32
    ds_write_b32 v6, v24
    s_lshr_b32 s33, s24, 2
    s_lshl_b32 s33, s33, 7
    s_add_u32 s32, s32, s33
    v_lshl_add_u32 v6, v3, 4, s32
    s_waitcnt lgkmcnt(0)""")
    for t in range(2):
        A(f"ds_read_b128 {vr(8+4*t,4)}, v6 offset:{64*t}")
    A("s_waitcnt lgkmcnt(0)")
    AC = 128
    for t in range(2):
        for e in range(8):
            c = vr(AC + 4 * e, 4) if t > 0 else "0"
            A(f"v_mfma_f32_16x16x32_bf16 {vr(AC+4*e,4)}, {vr((TW0,TW1)[t]+4*e,4)}, {vr(8+4*t,4)}, {c}")
    A(f"""s_lshl_b32 s32, s24, 9
    s_add_u32 s32, s32, {YL}
    v_lshl_add_u32 v5, v3, 7, s32
    v_cmp_eq_u32 vcc, 0, v4
    s_nop 4""")
    for r in range(4):
        for e in range(8):
            A(f"v_mov_b32 v{160+8*r+e}, v{AC+4*e+r}")
    A("s_and_saveexec_b64 s[36:37], vcc")
    for k in range(8):
        A(f"ds_write_b128 v5, {vr(160+4*k,4)} offset:{16*k}")
    A(f"""s_mov_b64 exec, s[36:37]
    s_waitcnt lgkmcnt(0)
    s_barrier                       ; B4
    s_cmp_lg_u32 s24, 0
    s_cbranch_scc1 L_final
    v_lshlrev_b32 v5, 3, v2
    v_add_u32 v5, {YL}, v5""")
    for w in range(8):
        A(f"ds_read_b64 v[{48+2*w}:{49+2*w}], v5 offset:{512*w}")
    A(f"""s_lshl_b32 s32, s26, 15
    s_lshl_b32 s33, s25, 12
    s_add_u32 s32, s32, s33
    s_lshl_b32 s33, s27, 10
    s_add_u32 s32, s32, s33
    s_add_u32 s32, s32, {WS_YT}
    v_lshlrev_b32 v5, 4, v2
    s_waitcnt lgkmcnt(0)
    v_add_f32 v24, v48, v50
    v_add_f32 v26, v49, v51""")
    for w in range(2, 8):
        A(f"""v_add_f32 v24, v24, v{48+2*w}
        v_add_f32 v26, v26, v{49+2*w}""")
    A("buffer_store_dwordx4 v[24:27], v5, s[20:23], s32 offen sc1")
    stamp(A, 8)

    A.label("L_final")
    A(f"""v_and_b32 v5, 255, v0
    v_lshlrev_b32 v5, 4, v5
    v_lshrrev_b32 v6, 8, v0            ; half
    v_lshl_add_u32 v9, v6, 14, v5      ; half*4*4096 + 16*(t%256)
    s_lshl_b32 s31, s26, 15
    s_add_u32 s31, s31, {WS_YT}""")

    def ldy():
        for k in range(4):
            A(f"s_add_u32 s32, s31, {4096*k}")
            A(f"buffer_load_dwordx4 {vr(16+4*k,4)}, v9, s[20:23], s32 offen sc1")
    tagged_poll(A, "L_poll3", ldy, [17 + 2 * k for k in range(8)], 10, 33)
    stamp(A, 9)
    A(f"""v_lshrrev_b32 v5, 1, v5
    v_lshl_add_u32 v5, v6, 11, v5
    v_add_f32 v16, v16, v20
    v_add_f32 v17, v18, v22
    v_add_f32 v24, v24, v28
    v_add_f32 v25, v26, v30
    v_add_f32 v16, v16, v24
    v_add_f32 v17, v17, v25
    ds_write_b64 v5, v[16:17] offset:{HS}
    s_waitcnt lgkmcnt(0)
    s_barrier                       ; B5
    s_cmp_ge_u32 s24, 4
    s_cbranch_scc1 L_b5b
    v_lshlrev_b32 v5, 5, v2""")
    for hg in range(2):
        A(f"ds_read_b128 {vr(16+8*hg,4)}, v5 offset:{HS+2048*hg}")
        A(f"ds_read_b128 {vr(20+8*hg,4)}, v5 offset:{HS+2048*hg+16}")
    unpack8(A, XR, 48)
    A("s_waitcnt lgkmcnt(0)")
    stamp(A, 10)
    for i in range(8):
        A(f"v_add_f32 v{16+i}, v{16+i}, v{24+i}")
    for i in range(0, 8, 2):
        bf16r2(A, 16 + i, 17 + i, 8)
    for i in range(8):
        A(f"v_add_f32 v{16+i}, v{16+i}, v{48+i}")
    for i in range(0, 8, 2):
        bf16r2(A, 16 + i, 17 + i, 8)
    A(f"""ds_write_b128 v5, v[16:19] offset:{HB}
    ds_write_b128 v5, v[20:23] offset:{HB+16}""")
    layernorm8(A, 16, 8, 9, 10)
    layernorm8(A, 16, 8, 9, 10)
    A(f"""ds_write_b128 v5, v[16:19] offset:{HN}
    ds_write_b128 v5, v[20:23] offset:{HN+16}
    s_waitcnt lgkmcnt(0)""")
    A.label("L_b5b")
    A(f"""s_barrier                       ; B5b
    s_and_b32 s30, s2, 31
    s_lshl_b32 s30, s30, 1
    s_lshr_b32 s31, s24, 2
    s_add_u32 s30, s30, s31
    s_lshl_b32 s30, s30, 5
    v_mov_b32 v5, s30
    ds_read_b128 v[40:43], v5 offset:{HN}
    ds_read_b128 v[44:47], v5 offset:{HN+16}""")
    for i in range(7):
        A(f"v_lshlrev_b32 v{W1R+i}, 16, v{W1R+i}")
        A(f"v_lshlrev_b32 v{B1R+i}, 16, v{B1R+i}")
        A(f"v_lshlrev_b32 v{W2R+i}, 16, v{W2R+i}")
    A("s_waitcnt lgkmcnt(0)")
    stamp(A, 13)
    c1 = -2 * 0.7978845608028654 * 1.4426950408889634
    c3 = c1 * 0.044715
    A(f"""v_mov_b32 v56, {f32hex(c1)}
    v_mov_b32 v57, {f32hex(c1)}
    v_mov_b32 v58, {f32hex(c3)}
    v_mov_b32 v59, {f32hex(c3)}
    v_mov_b32 v60, 1.0
    v_mov_b32 v61, 1.0""")
    MA = 96

    def bc(r):
        return (f"v[{r & ~1}:{(r & ~1)+1}]", r & 1)
    k = 0
    for i in range(7):
        w1, s1 = bc(W1R + i)
        b1, s2 = bc(B1R + i)
        w2, s3 = bc(W2R + i)
        for ep in range(4):
            u = 8 + 6 * (k % 2)
            z = u + 2
            y = u + 4
            k += 1
            A(f"""v_pk_fma_f32 v[{u}:{u+1}], v[{40+2*ep}:{41+2*ep}], {w1}, {b1} op_sel:[0,{s1},{s2}] op_sel_hi:[1,{s1},{s2}]
            v_pk_mul_f32 v[{z}:{z+1}], v[{u}:{u+1}], v[{u}:{u+1}]
            v_pk_fma_f32 v[{z}:{z+1}], v[{z}:{z+1}], v[58:59], v[56:57]
            v_pk_mul_f32 v[{z}:{z+1}], v[{z}:{z+1}], v[{u}:{u+1}]
            v_pk_mul_f32 v[{y}:{y+1}], v[{u}:{u+1}], {w2} op_sel:[0,{s3}] op_sel_hi:[1,{s3}]
            v_exp_f32 v{z}, v{z}
            v_exp_f32 v{z+1}, v{z+1}
            s_nop 0
            v_pk_add_f32 v[{z}:{z+1}], v[{z}:{z+1}], v[60:61]
            v_rcp_f32 v{z}, v{z}
            v_rcp_f32 v{z+1}, v{z+1}
            s_nop 0""")
            if i == 0:
                A(f"v_pk_mul_f32 v[{MA+2*ep}:{MA+2*ep+1}], v[{y}:{y+1}], v[{z}:{z+1}]")
            else:
                A(f"v_pk_fma_f32 v[{MA+2*ep}:{MA+2*ep+1}], v[{y}:{y+1}], v[{z}:{z+1}], v[{MA+2*ep}:{MA+2*ep+1}]")
    stamp(A, 14)
    A("s_nop 1")
    for ctl in ["quad_perm:[1,0,3,2]", "quad_perm:[2,3,0,1]", "row_half_mirror", "row_mirror"]:
        for e in range(8):
            A(f"v_add_f32_dpp v{MA+e}, v{MA+e}, v{MA+e} {ctl} row_mask:0xf bank_mask:0xf")
    A(f"""v_lshrrev_b32 v8, 4, v0
    v_lshlrev_b32 v8, 5, v8
    v_cmp_eq_u32 vcc, 0, v4
    s_and_saveexec_b64 s[34:35], vcc""")
    for k in range(2):
        A(f"ds_write_b128 v8, {vr(MA+4*k,4)} offset:{RS+16*k}")
    A(f"""s_mov_b64 exec, s[34:35]
    s_waitcnt lgkmcnt(0)
    s_barrier                       ; B6""")
    stamp(A, 11)
    if STAMPS:
        A(f"""s_lshl_b32 s30, s2, 9
        s_lshl_b32 s31, s24, 6
        s_add_u32 s30, s30, s31
        s_add_u32 s30, s30, {WS_ST}
        v_lshlrev_b32 v8, 2, v2
        v_cmp_gt_u32 vcc, 16, v2
        s_and_saveexec_b64 s[34:35], vcc
        buffer_store_dword v{STV}, v8, s[20:23], s30 offen
        s_mov_b64 exec, s[34:35]""")
    A(f"""v_cmp_gt_u32 vcc, 16, v0
    s_and_saveexec_b64 s[34:35], vcc
    s_cbranch_execz L_done
    v_lshrrev_b32 v8, 3, v0
    v_lshlrev_b32 v8, 9, v8
    v_and_b32 v9, 7, v0
    v_lshl_add_u32 v8, v9, 2, v8""")
    for k in range(16):
        A(f"ds_read_b32 v{16+k}, v8 offset:{RS+32*k}")
    A(f"""s_and_b32 s30, s2, 31
    s_lshl_b32 s30, s30, 6
    v_lshlrev_b32 v9, 2, v0
    v_add_u32 v9, s30, v9
    ds_read_b32 v10, v9 offset:{HB}
    s_waitcnt lgkmcnt(0)""")
    for k in range(1, 16):
        A(f"v_add_f32 v16, v16, v{16+k}")
    bf16r1(A, 16)
    A(f"""v_lshlrev_b32 v{B2R}, 16, v{B2R}
    v_add_f32 v16, v16, v{B2R}""")
    bf16r1(A, 16)
    A(f"""v_add_f32 v16, v16, v10
    v_cvt_pk_bf16_f32 v16, v16, v16
    v_lshlrev_b32 v8, 1, v0
    s_lshr_b32 s30, s30, 1
    s_lshl_b32 s31, s26, 10
    s_add_u32 s30, s30, s31
    buffer_store_short v16, v8, s[72:75], s30 offen""")
    A.label("L_done")
    A("s_endpgm")
    return name, kdesc(name, 256)


def main():
    global STAMPS
    out = sys.argv[1] if len(sys.argv) > 1 else f"cdna_kernels/{NAME}.s"
    for a in sys.argv[2:]:
        if a == "stamps":
            STAMPS = True
        elif "=" in a:
            k, v = a.split("=")
            OPT[k] = v
    A = Asm()
    n, d = k_fused(A)
    txt = HEADER + f"; @launch grid=(256,1,1) block=(512,1,1) lds={LDS_BYTES}\n"
    txt += '.amdgcn_target "amdgcn-amd-amdhsa--gfx950"\n.text\n'
    txt += A.text()
    txt += '.section .rodata,"a"\n.p2align 6\n' + d
    open(out, "w").write(txt)
    print(LDS_BYTES)


if __name__ == "__main__":
    main()
```

```python
import sys
import struct
from gen import Asm, vr, sr, srd, allreduce, reduce_rows, bf16r1, bf16r2, layernorm8, unpack8, kernel_begin, kdesc, HEADER, NAME, SCALE, LOG2E, NLOG2E

WS_QT = 0x0
WS_PT = 0x100000
WS_PML = 0x200000
WS_YT = 0x300000
WS_ST = 0x380000
WS_BYTES = 0x400000

QL = 131072
XN = QL + 1024
WQL = XN + 8192
OB = WQL + 16384
YL = OB + 2048
TAGL = YL + 4096
LDS_BYTES = TAGL + 16
HS = 0
HB = 8192
RS = 16384
HN = 12288

POLL_LIMIT = 1000000
TAG = 43

QF, KF, VF, S, P, M, L = 32, 48, 64, 80, 84, 86, 87
MX, T0, AL, NM = 28, 29, 30, 31
ACC = 96
TW = 128
RAW = 128
TW0, TW1 = 96, 192
W1R, B1R, W2R, XR, B2R, STV = 224, 232, 240, 250, 254, 255

STAMPS = False
OPT = {"na": "1", "nb": "2"}


def f32hex(x):
    return "0x%08x" % struct.unpack("<I", struct.pack("<f", x))[0]


def stamp(A, idx):
    if not STAMPS:
        return
    A(f"""s_memrealtime s[98:99]
    s_waitcnt lgkmcnt(0)
    v_writelane_b32 v{STV}, s98, {idx}""")


def tagged_poll(A, label, loads, tagregs, vt, scnt):
    A(f"s_mov_b32 s{scnt}, 0")
    A.label(label)
    loads()
    A("s_waitcnt vmcnt(0)")
    A(f"v_xor_b32 v{vt}, s{TAG}, v{tagregs[0]}")
    for t in tagregs[1:]:
        A(f"v_xor_b32 v{vt+1}, s{TAG}, v{t}")
        A(f"v_or_b32 v{vt}, v{vt}, v{vt+1}")
    A(f"""v_cmp_ne_u32 vcc, 0, v{vt}
    s_cmp_eq_u64 vcc, 0
    s_cbranch_scc1 {label}_ok
    s_sleep 1
    s_add_u32 s{scnt}, s{scnt}, 1
    s_cmp_lt_u32 s{scnt}, {POLL_LIMIT}
    s_cbranch_scc1 {label}""")
    A.label(label + "_ok")


def k_fused(A):
    name = NAME + "_kernel"
    NT = OPT.get("nt", " nt").replace("_", " ")
    na, nb = int(OPT["na"]), int(OPT["nb"])
    WNT = " nt" if OPT.get("wnt", "0") == "1" else ""
    XNT = " nt" if OPT.get("xnt", "0") == "1" else ""
    kernel_begin(A, name)
    A(f"""s_cmp_ge_u32 s2, 256
    s_cbranch_scc1 L_done
    s_load_dwordx16 s[80:95], s[0:1], 0
    s_load_dwordx8 s[4:11], s[0:1], 64
    s_load_dwordx2 s[96:97], s[0:1], 96
    v_lshrrev_b32 v1, 6, v0
    v_and_b32 v2, 63, v0
    s_nop 0
    v_readfirstlane_b32 s24, v1
    s_and_b32 s25, s2, 7               ; hkv
    s_lshr_b32 s26, s2, 5              ; b
    s_bfe_u32 s27, s2, 0x20003         ; split
    v_lshrrev_b32 v3, 4, v2            ; g
    v_and_b32 v4, 15, v2               ; i / j
    s_and_b32 s28, s24, 3
    s_waitcnt lgkmcnt(0)""")
    srd(A, 76, 10, 256)
    if STAMPS:
        A(f"v_mov_b32 v{STV}, 0")
    stamp(A, 0)
    A(f"""s_or_b32 s30, s2, s24
    s_cmp_lg_u32 s30, 0
    s_cbranch_scc1 L_notag
    v_mov_b32 v7, 0
    s_memrealtime s[98:99]
    s_waitcnt lgkmcnt(0)
    s_or_b32 s98, s98, 1
    v_mov_b32 v6, s98
    s_mov_b64 exec, 1
    buffer_store_dword v6, v7, s[76:79], 0 offen sc1
    s_mov_b64 exec, -1""")
    A.label("L_notag")
    srd(A, 48, 86, 4194304)
    srd(A, 44, 80, 8192)
    A(f"""s_lshr_b32 s30, s2, 3
    s_cmp_lg_u32 s24, 0
    s_cbranch_scc1 L_nodma
    s_lshl_b32 s31, s25, 10
    s_lshl_b32 s33, s30, 5
    s_add_u32 s33, s33, s31
    v_lshrrev_b32 v6, 1, v2
    v_lshlrev_b32 v6, 13, v6
    v_and_b32 v7, 1, v2
    v_lshl_add_u32 v6, v7, 4, v6""")
    for i in range(16):
        A(f"""s_mov_b32 m0, {WQL + 1024*i}
        s_nop 0
        buffer_load_dwordx4 v6, s[48:51], s33 offen{WNT} lds
        s_add_u32 s33, s33, 262144""")
    A.label("L_nodma")
    A(f"""s_lshl_b32 s29, s24, 10
    v_lshlrev_b32 v5, 4, v2
    buffer_load_dwordx4 v[192:195], v5, s[44:47], s29 offen{XNT}""")
    srd(A, 12, 82, 134217728)
    srd(A, 16, 84, 134217728)
    srd(A, 20, 96, WS_BYTES)
    srd(A, 52, 88, 4194304)
    srd(A, 56, 92, 3584)
    srd(A, 60, 94, 3584)
    srd(A, 64, 4, 3584)
    srd(A, 68, 6, 2)
    srd(A, 72, 8, 8192)
    A(f"""s_lshl_b32 s31, s26, 3
    s_add_u32 s31, s31, s25            ; pair
    s_lshl_b32 s29, s31, 21
    s_lshl_b32 s31, s27, 19
    s_add_u32 s29, s29, s31
    s_lshl_b32 s31, s24, 12
    s_add_u32 s29, s29, s31
    s_mov_b32 s40, s29                 ; V
    s_lshl_b32 s31, s24, 14
    """)
    for i in range(4):
        A(f"""v_add_u32 v5, {4*i}, v3
        v_xor_b32 v5, v5, v4
        v_lshlrev_b32 v5, 4, v5
        v_lshl_add_u32 v{10+i}, v3, 8, v5""")
    for i in range(2):
        A(f"""v_add_u32 v5, {4*i}, v3
        v_lshlrev_b32 v5, 1, v5
        v_xor_b32 v5, v5, v4
        v_lshlrev_b32 v5, 4, v5
        v_lshl_add_u32 v{14+i}, v3, 8, v5""")

    def issue(kind, slot):
        sreg = 29 if kind == "K" else 40
        sd = 12 if kind == "K" else 16
        lds = (0 if kind == "K" else 8192) + 4096 * slot
        A(f"s_add_u32 m0, s31, {lds}")
        A("s_nop 0")
        for i in range(4):
            vo = (10 + i) if kind == "K" else (14 + i % 2)
            A(f"buffer_load_dwordx4 v{vo}, {sr(sd,4)}, s{sreg} offen offset:{1024*i}{NT} lds")
        A(f"s_add_u32 s{sreg}, s{sreg}, 32768")

    seq = [("K", 0), ("V", 0), ("K", 1), ("V", 1)]
    for x in seq[:na]:
        issue(*x)
    A(f"""v_xor_b32 v5, v3, v4
    v_lshlrev_b32 v5, 4, v5
    v_lshl_add_u32 v5, v4, 8, v5
    v_add_u32 v5, s31, v5""")
    for s in range(4):
        A(f"v_xor_b32 v{16+s}, {64*s}, v5")
    A(f"""v_lshrrev_b32 v5, 2, v4          ; r
    v_lshl_add_u32 v5, v3, 2, v5       ; rho
    v_and_b32 v6, 7, v5
    v_lshlrev_b32 v6, 5, v6
    v_lshl_add_u32 v6, v5, 8, v6
    v_and_b32 v7, 3, v4
    v_lshl_add_u32 v6, v7, 3, v6
    v_add_u32 v6, s31, v6""")
    for t in range(8):
        A(f"v_xor_b32 v{20+t}, {32*t}, v6")
    A(f"""s_mov_b32 s34, {LOG2E}
    s_mov_b32 s38, 0x05040100
    s_mov_b32 s39, 0x07060302
    s_waitcnt vmcnt({4*na})""")
    stamp(A, 12)
    unpack8(A, 192, 200)
    layernorm8(A, 200, 208, 209, 210)
    for i in range(4):
        A(f"v_cvt_pk_bf16_f32 v{192+i}, v{200+2*i}, v{201+2*i}")
    A(f"""s_lshl_b32 s32, s24, 10
    s_add_u32 s32, s32, {XN}
    v_lshl_add_u32 v5, v2, 4, s32
    ds_write_b128 v5, v[192:195]
    s_cmp_lg_u32 s24, 1
    s_cbranch_scc1 L_b1
    v_mov_b32 v7, 0
    s_mov_b32 s33, 0""")
    A.label("L_ptag")
    A(f"""buffer_load_dword v6, v7, s[76:79], 0 offen sc1
    s_waitcnt vmcnt(0)
    v_readfirstlane_b32 s32, v6
    s_cmp_lg_u32 s32, 0
    s_cbranch_scc1 L_ptag_ok
    s_sleep 1
    s_add_u32 s33, s33, 1
    s_cmp_lt_u32 s33, {POLL_LIMIT}
    s_cbranch_scc1 L_ptag""")
    A.label("L_ptag_ok")
    A(f"""v_mov_b32 v7, {TAGL}
    ds_write_b32 v7, v6""")
    A.label("L_b1")
    A(f"""s_waitcnt lgkmcnt(0)
    s_barrier                       ; B1
    v_mov_b32 v7, {TAGL}
    ds_read_b32 v6, v7
    s_waitcnt lgkmcnt(0)
    v_readfirstlane_b32 s{TAG}, v6
    s_cmp_lg_u32 s24, 0
    s_cbranch_scc1 L_noq""")
    stamp(A, 1)
    A(f"""v_lshrrev_b32 v5, 2, v4          ; r
    v_lshl_add_u32 v5, v3, 3, v5       ; 8g + r
    v_lshlrev_b32 v5, 5, v5
    v_and_b32 v6, 3, v4
    v_lshl_add_u32 v5, v6, 3, v5
    v_add_u32 v5, {WQL}, v5
    v_and_b32 v6, 7, v4
    v_lshlrev_b32 v6, 10, v6
    v_lshl_add_u32 v6, v3, 4, v6
    v_add_u32 v6, {XN}, v6""")
    QA = 192
    for t in range(16):
        a = QA + 8 * (t % 3)
        A(f"""ds_read_b64_tr_b16 {vr(a,2)}, v5 offset:{1024*t}
        ds_read_b64_tr_b16 {vr(a+2,2)}, v5 offset:{1024*t+128}
        ds_read_b128 {vr(a+4,4)}, v6 offset:{64*t}""")
        if t >= 2:
            tt = t - 2
            aa = QA + 8 * (tt % 3)
            A("s_waitcnt lgkmcnt(6)")
            c = "v[216:219]" if tt > 0 else "0"
            A(f"v_mfma_f32_16x16x32_bf16 v[216:219], {vr(aa,4)}, {vr(aa+4,4)}, {c}")
    for tt in range(14, 16):
        aa = QA + 8 * (tt % 3)
        A(f"s_waitcnt lgkmcnt({3*(15-tt)})")
        A(f"v_mfma_f32_16x16x32_bf16 v[216:219], {vr(aa,4)}, {vr(aa+4,4)}, v[216:219]")
    A(f"""v_mov_b32 v221, s{TAG}
    v_mov_b32 v223, s{TAG}
    v_lshlrev_b32 v5, 14, v4
    v_lshl_add_u32 v5, v3, 4, v5
    s_lshl_b32 s32, s25, 11
    s_lshl_b32 s33, s30, 6
    s_add_u32 s32, s32, s33
    s_add_u32 s32, s32, {WS_QT}
    v_cmp_gt_u32 vcc, 8, v4
    s_nop 3
    v_cvt_pk_bf16_f32 v220, v216, v217
    v_cvt_pk_bf16_f32 v222, v218, v219
    s_and_saveexec_b64 s[36:37], vcc
    buffer_store_dwordx4 v[220:223], v5, s[20:23], s32 offen sc1
    s_mov_b64 exec, s[36:37]""")
    stamp(A, 2)
    A.label("L_noq")
    A("s_barrier                       ; B1b")
    for x in seq[na:na + nb]:
        issue(*x)

    def transpose(src, dst):
        for e in range(8):
            sel = 38 if e % 2 == 0 else 39
            for p in range(4):
                A(f"v_perm_b32 v{dst+4*e+p}, v{src+4*(2*p+1)+e//2}, v{src+4*(2*p)+e//2}, s{sel}")
    A("s_barrier                       ; B1c")
    A(f"""s_cmp_lg_u32 s24, 0
    s_cbranch_scc1 L_rest
    s_lshl_b32 s32, s26, 14
    s_lshl_b32 s33, s25, 11
    s_add_u32 s32, s32, s33
    s_add_u32 s32, s32, {WS_QT}
    v_lshlrev_b32 v5, 5, v2""")

    def ldq():
        A(f"""buffer_load_dwordx4 v[192:195], v5, s[20:23], s32 offen sc1
        buffer_load_dwordx4 v[196:199], v5, s[20:23], s32 offen offset:16 sc1""")
    if OPT.get("noq", "0") == "0":
        tagged_poll(A, "L_pollq", ldq, [193, 195, 197, 199], 6, 33)
    stamp(A, 3)
    A(f"""v_mov_b32 v193, v194
    v_mov_b32 v194, v196
    v_mov_b32 v195, v198
    v_lshlrev_b32 v5, 4, v2
    v_add_u32 v5, {QL}, v5
    ds_write_b128 v5, v[192:195]""")
    A.label("L_rest")
    for x in seq[na + nb:]:
        issue(*x)
    A(f"""v_mov_b32 v{M}, 0xff800000
    v_mov_b32 v{L}, 0""")
    for i in range(32):
        A(f"v_mov_b32 v{ACC+i}, 0")
    A(f"""v_and_b32 v5, 3, v4
    v_lshlrev_b32 v5, 8, v5
    v_lshl_add_u32 v5, v3, 4, v5
    v_add_u32 v5, {QL}, v5
    s_waitcnt lgkmcnt(0)
    s_barrier                       ; B2""")
    for s in range(4):
        A(f"ds_read_b128 {vr(QF+4*s,4)}, v5 offset:{64*s}")
    A("s_waitcnt lgkmcnt(0)")
    stamp(A, 4)
    A(f"""v_lshlrev_b32 v5, 13, v3          ; 8g*1024
    v_lshl_add_u32 v5, v4, 4, v5
    s_lshl_b32 s35, s25, 2
    s_add_u32 s35, s35, s28
    s_lshl_b32 s35, s35, 17
    s_lshr_b32 s32, s24, 2
    s_lshl_b32 s32, s32, 16
    s_add_u32 s35, s35, s32
    s_lshl_b32 s32, s27, 8
    s_add_u32 s35, s35, s32""")
    for t in range(2):
        for r in range(8):
            A(f"s_add_u32 s32, s35, {(32*t + r)*1024}")
            A(f"buffer_load_dwordx4 {vr(RAW+32*t+4*r,4)}, v5, s[52:55], s32 offen{WNT}")
    A("""v_and_b32 v6, 255, v0
    v_lshlrev_b32 v6, 1, v6""")
    for i in range(7):
        A(f"buffer_load_ushort v{W1R+i}, v6, s[56:59], 0 offen offset:{512*i}{XNT}")
        A(f"buffer_load_ushort v{B1R+i}, v6, s[60:63], 0 offen offset:{512*i}{XNT}")
        A(f"buffer_load_ushort v{W2R+i}, v6, s[64:67], 0 offen offset:{512*i}{XNT}")
    A(f"""v_mov_b32 v7, 0
    buffer_load_ushort v{B2R}, v7, s[68:71], 0 offen{XNT}
    v_lshlrev_b32 v6, 4, v2
    s_lshl_b32 s42, s26, 10
    buffer_load_dwordx4 {vr(XR,4)}, v6, s[44:47], s42 offen{XNT}""")

    def tile(slot, do_issue, wK, wV):
        strip = OPT.get("strip", "0")
        if strip == "1":
            A(f"s_waitcnt vmcnt({wK})")
            if do_issue:
                issue("K", slot)
            A(f"s_waitcnt vmcnt({wV})")
            if do_issue:
                issue("V", slot)
            return
        if strip == "2":
            A(f"s_waitcnt vmcnt({wK})")
            for s in range(4):
                A(f"ds_read_b128 {vr(KF+4*s,4)}, v{16+s} offset:{4096*slot}")
            A("s_waitcnt lgkmcnt(0)")
            for s in range(4):
                c = vr(S, 4) if s > 0 else "0"
                A(f"v_mfma_f32_16x16x32_bf16 {vr(S,4)}, {vr(KF+4*s,4)}, {vr(QF+4*s,4)}, {c}")
            if do_issue:
                issue("K", slot)
            A(f"s_waitcnt vmcnt({wV})")
            for t in range(8):
                A(f"ds_read_b64_tr_b16 {vr(VF+2*t,2)}, v{20+t} offset:{8192 + 4096*slot}")
            A("s_waitcnt lgkmcnt(0)")
            A("s_nop 1")
            for t in range(8):
                A(f"v_mfma_f32_16x16x16_bf16 {vr(ACC+4*t,4)}, {vr(VF+2*t,2)}, {vr(P,2)}, {vr(ACC+4*t,4)}")
            if do_issue:
                issue("V", slot)
            return
        A(f"s_waitcnt vmcnt({wK})")
        for s in range(4):
            A(f"ds_read_b128 {vr(KF+4*s,4)}, v{16+s} offset:{4096*slot}")
        A("s_waitcnt lgkmcnt(0)")
        for s in range(4):
            c = vr(S, 4) if s > 0 else "0"
            A(f"v_mfma_f32_16x16x32_bf16 {vr(S,4)}, {vr(KF+4*s,4)}, {vr(QF+4*s,4)}, {c}")
        if do_issue:
            issue("K", slot)
            A("s_nop 1")
        else:
            A("s_nop 7")
        for i in range(0, 4, 2):
            bf16r2(A, S + i, S + i + 1, T0)
        for i in range(4):
            A(f"v_mul_f32 v{S+i}, {SCALE}, v{S+i}")
        for i in range(0, 4, 2):
            bf16r2(A, S + i, S + i + 1, T0)
        A(f"""v_max3_f32 v{MX}, v{S}, v{S+1}, v{S+2}
        v_max_f32 v{MX}, v{MX}, v{S+3}""")
        reduce_rows(A, MX, T0, "max")
        A(f"""v_max_f32 v{MX}, v{MX}, v{M}
        v_sub_f32 v{T0}, v{M}, v{MX}
        v_mul_f32 v{T0}, {LOG2E}, v{T0}
        v_exp_f32 v{AL}, v{T0}
        v_mul_f32 v{NM}, {NLOG2E}, v{MX}
        v_mov_b32 v{M}, v{MX}""")
        for i in range(4):
            A(f"v_fma_f32 v{S+i}, v{S+i}, s34, v{NM}")
        for i in range(4):
            A(f"v_exp_f32 v{S+i}, v{S+i}")
        A(f"v_mul_f32 v{L}, v{L}, v{AL}")
        A(f"s_waitcnt vmcnt({wV})")
        for t in range(8):
            A(f"ds_read_b64_tr_b16 {vr(VF+2*t,2)}, v{20+t} offset:{8192 + 4096*slot}")
        for i in range(32):
            A(f"v_mul_f32 v{ACC+i}, v{ACC+i}, v{AL}")
        for i in range(4):
            A(f"v_add_f32 v{L}, v{L}, v{S+i}")
        for i in range(2):
            A(f"v_cvt_pk_bf16_f32 v{P+i}, v{S+2*i}, v{S+2*i+1}")
        A("s_waitcnt lgkmcnt(0)")
        A("s_nop 1")
        for t in range(8):
            A(f"v_mfma_f32_16x16x16_bf16 {vr(ACC+4*t,4)}, {vr(VF+2*t,2)}, {vr(P,2)}, {vr(ACC+4*t,4)}")
        if do_issue:
            issue("V", slot)
        else:
            A("s_nop 3")

    tile(0, True, 51, 51)
    tile(1, True, 51, 51)
    A("s_mov_b32 s35, 0")
    A.label("L_a_loop")
    tile(0, True, 12, 12)
    tile(1, True, 12, 12)
    A("""s_add_u32 s35, s35, 1
    s_cmp_lt_u32 s35, 6
    s_cbranch_scc1 L_a_loop""")
    tile(0, False, 12, 8)
    tile(1, False, 4, 0)
    A("s_nop 7")
    A("s_nop 1")
    reduce_rows(A, L, T0, "add")
    stamp(A, 5)
    A(f"""v_lshlrev_b32 v5, 9, v4
    v_lshl_add_u32 v5, v3, 4, v5
    v_add_u32 v5, s31, v5
    v_lshlrev_b32 v6, 3, v4
    v_add_u32 v6, s31, v6
    v_cmp_gt_u32 vcc, 4, v4
    s_and_saveexec_b64 s[36:37], vcc""")
    for t in range(8):
        A(f"ds_write_b128 v5, {vr(ACC+4*t,4)} offset:{64*t}")
    A(f"""ds_write_b64 v6, v[{M}:{L}] offset:2048
    s_mov_b64 exec, s[36:37]
    s_lshl_b32 s32, s28, 9
    v_lshl_add_u32 v5, v2, 3, s32
    v_add_u32 v6, 0x10000, v5
    s_lshl_b32 s32, s28, 3
    v_mov_b32 v7, s32
    v_add_u32 v8, 0x10000, v7
    v_lshlrev_b32 v9, 4, v2             ; 16 l
    v_mov_b32 v30, 0
    v_mov_b32 v25, s{TAG}
    v_mov_b32 v27, s{TAG}
    s_waitcnt lgkmcnt(0)
    s_barrier                       ; B3
    s_cmp_ge_u32 s24, 4
    s_cbranch_scc1 L_nopub""")
    O = 48
    MLr = 64
    for w in range(8):
        A(f"ds_read_b64 {vr(MLr+2*w,2)}, v{7 if w<4 else 8} offset:{16384*(w%4) + 2048}")
    for w in range(8):
        A(f"ds_read_b64 {vr(O+2*w,2)}, v{5 if w<4 else 6} offset:{16384*(w%4)}")
    A(f"""s_lshl_b32 s32, s2, 12
    s_lshl_b32 s33, s28, 10
    s_add_u32 s32, s32, s33
    s_add_u32 s32, s32, {WS_PT}
    s_lshl_b32 s33, s2, 6
    s_lshl_b32 s35, s28, 4
    s_add_u32 s33, s33, s35
    s_add_u32 s33, s33, {WS_PML}
    s_waitcnt lgkmcnt(0)
    v_max3_f32 v20, v{MLr}, v{MLr+2}, v{MLr+4}
    v_max3_f32 v20, v20, v{MLr+6}, v{MLr+8}
    v_max3_f32 v20, v20, v{MLr+10}, v{MLr+12}
    v_max_f32 v20, v20, v{MLr+14}""")
    for w in range(8):
        A(f"""v_sub_f32 v19, v{MLr+2*w}, v20
        v_mul_f32 v19, {LOG2E}, v19
        v_exp_f32 v{80+w}, v19""")
    A(f"""v_mov_b32 v21, s{TAG}
    v_mov_b32 v23, s{TAG}
    v_mul_f32 v24, v{O}, v80
    v_mul_f32 v26, v{O+1}, v80
    v_mul_f32 v22, v{MLr+1}, v80""")
    for w in range(1, 8):
        A(f"""v_fmac_f32 v24, v{O+2*w}, v{80+w}
        v_fmac_f32 v26, v{O+2*w+1}, v{80+w}
        v_fmac_f32 v22, v{MLr+2*w+1}, v{80+w}""")
    A(f"""buffer_store_dwordx4 v[24:27], v9, s[20:23], s32 offen sc1
    s_mov_b64 exec, 1
    buffer_store_dwordx4 v[20:23], v30, s[20:23], s33 offen sc1
    s_mov_b64 exec, -1""")
    A.label("L_nopub")
    A(f"""s_lshl_b32 s32, s26, 5
    s_add_u32 s32, s32, s25
    s_lshl_b32 s33, s32, 6
    s_lshl_b32 s35, s28, 4
    s_add_u32 s33, s33, s35
    s_add_u32 s33, s33, {WS_PML}
    s_lshl_b32 s32, s32, 12
    s_lshl_b32 s35, s28, 10
    s_add_u32 s32, s32, s35
    s_add_u32 s32, s32, {WS_PT}""")
    transpose(RAW, TW0)
    transpose(RAW + 32, TW1)
    stamp(A, 6)
    ML = 64

    def ldp():
        for s in range(4):
            A(f"s_add_u32 s35, s32, {32768*s}")
            A(f"buffer_load_dwordx4 {vr(O+4*s,4)}, v9, s[20:23], s35 offen sc1")
        for s in range(4):
            A(f"buffer_load_dwordx4 {vr(ML+4*s,4)}, v30, s[20:23], s33 offen offset:{512*s} sc1")
    tagged_poll(A, "L_poll2", ldp, [O + 1 + 2 * k for k in range(8)] + [ML + 1 + 2 * k for k in range(8)], 6, 36)
    stamp(A, 7)
    A(f"""v_max_f32 v18, v{ML}, v{ML+4}
    v_max3_f32 v18, v18, v{ML+8}, v{ML+12}""")
    for s in range(4):
        A(f"""v_sub_f32 v19, v{ML+4*s}, v18
        v_mul_f32 v19, {LOG2E}, v19
        v_exp_f32 v{20+s}, v19""")
    A(f"""s_nop 0
    v_mul_f32 v19, v{ML+2}, v20
    v_mul_f32 v24, v{O}, v20
    v_mul_f32 v26, v{O+2}, v20""")
    for s in range(1, 4):
        A(f"""v_fmac_f32 v19, v{ML+4*s+2}, v{20+s}
        v_fmac_f32 v24, v{O+4*s}, v{20+s}
        v_fmac_f32 v26, v{O+4*s+2}, v{20+s}""")
    A(f"""v_rcp_f32 v19, v19
    s_lshl_b32 s32, s24, 8
    s_add_u32 s32, s32, {OB}
    v_mul_f32 v24, v24, v19
    v_mul_f32 v26, v26, v19
    v_cvt_pk_bf16_f32 v24, v24, v26
    v_lshl_add_u32 v6, v2, 2, s32
    ds_write_b32 v6, v24
    s_lshr_b32 s33, s24, 2
    s_lshl_b32 s33, s33, 7
    s_add_u32 s32, s32, s33
    v_lshl_add_u32 v6, v3, 4, s32
    s_waitcnt lgkmcnt(0)""")
    for t in range(2):
        A(f"ds_read_b128 {vr(8+4*t,4)}, v6 offset:{64*t}")
    A("s_waitcnt lgkmcnt(0)")
    AC = 128
    for t in range(2):
        for e in range(8):
            c = vr(AC + 4 * e, 4) if t > 0 else "0"
            A(f"v_mfma_f32_16x16x32_bf16 {vr(AC+4*e,4)}, {vr((TW0,TW1)[t]+4*e,4)}, {vr(8+4*t,4)}, {c}")
    A(f"""s_lshl_b32 s32, s24, 9
    s_add_u32 s32, s32, {YL}
    v_lshl_add_u32 v5, v3, 7, s32
    v_cmp_eq_u32 vcc, 0, v4
    s_nop 4""")
    for r in range(4):
        for e in range(8):
            A(f"v_mov_b32 v{160+8*r+e}, v{AC+4*e+r}")
    A("s_and_saveexec_b64 s[36:37], vcc")
    for k in range(8):
        A(f"ds_write_b128 v5, {vr(160+4*k,4)} offset:{16*k}")
    A(f"""s_mov_b64 exec, s[36:37]
    s_waitcnt lgkmcnt(0)
    s_barrier                       ; B4
    s_cmp_lg_u32 s24, 0
    s_cbranch_scc1 L_final
    v_lshlrev_b32 v5, 3, v2
    v_add_u32 v5, {YL}, v5""")
    for w in range(8):
        A(f"ds_read_b64 v[{48+2*w}:{49+2*w}], v5 offset:{512*w}")
    A(f"""s_lshl_b32 s32, s26, 15
    s_lshl_b32 s33, s25, 12
    s_add_u32 s32, s32, s33
    s_lshl_b32 s33, s27, 10
    s_add_u32 s32, s32, s33
    s_add_u32 s32, s32, {WS_YT}
    v_lshlrev_b32 v5, 4, v2
    s_waitcnt lgkmcnt(0)
    v_add_f32 v24, v48, v50
    v_add_f32 v26, v49, v51""")
    for w in range(2, 8):
        A(f"""v_add_f32 v24, v24, v{48+2*w}
        v_add_f32 v26, v26, v{49+2*w}""")
    A("buffer_store_dwordx4 v[24:27], v5, s[20:23], s32 offen sc1")
    stamp(A, 8)

    A.label("L_final")
    A(f"""v_and_b32 v5, 255, v0
    v_lshlrev_b32 v5, 4, v5
    v_lshrrev_b32 v6, 8, v0            ; half
    v_lshl_add_u32 v9, v6, 14, v5      ; half*4*4096 + 16*(t%256)
    s_lshl_b32 s31, s26, 15
    s_add_u32 s31, s31, {WS_YT}""")

    def ldy():
        for k in range(4):
            A(f"s_add_u32 s32, s31, {4096*k}")
            A(f"buffer_load_dwordx4 {vr(16+4*k,4)}, v9, s[20:23], s32 offen sc1")
    tagged_poll(A, "L_poll3", ldy, [17 + 2 * k for k in range(8)], 10, 33)
    stamp(A, 9)
    A(f"""v_lshrrev_b32 v5, 1, v5
    v_lshl_add_u32 v5, v6, 11, v5
    v_add_f32 v16, v16, v20
    v_add_f32 v17, v18, v22
    v_add_f32 v24, v24, v28
    v_add_f32 v25, v26, v30
    v_add_f32 v16, v16, v24
    v_add_f32 v17, v17, v25
    ds_write_b64 v5, v[16:17] offset:{HS}
    s_waitcnt lgkmcnt(0)
    s_barrier                       ; B5
    s_cmp_ge_u32 s24, 4
    s_cbranch_scc1 L_b5b
    v_lshlrev_b32 v5, 5, v2""")
    for hg in range(2):
        A(f"ds_read_b128 {vr(16+8*hg,4)}, v5 offset:{HS+2048*hg}")
        A(f"ds_read_b128 {vr(20+8*hg,4)}, v5 offset:{HS+2048*hg+16}")
    unpack8(A, XR, 48)
    A("s_waitcnt lgkmcnt(0)")
    stamp(A, 10)
    for i in range(8):
        A(f"v_add_f32 v{16+i}, v{16+i}, v{24+i}")
    for i in range(0, 8, 2):
        bf16r2(A, 16 + i, 17 + i, 8)
    for i in range(8):
        A(f"v_add_f32 v{16+i}, v{16+i}, v{48+i}")
    for i in range(0, 8, 2):
        bf16r2(A, 16 + i, 17 + i, 8)
    A(f"""ds_write_b128 v5, v[16:19] offset:{HB}
    ds_write_b128 v5, v[20:23] offset:{HB+16}""")
    layernorm8(A, 16, 8, 9, 10)
    layernorm8(A, 16, 8, 9, 10)
    A(f"""ds_write_b128 v5, v[16:19] offset:{HN}
    ds_write_b128 v5, v[20:23] offset:{HN+16}
    s_waitcnt lgkmcnt(0)""")
    A.label("L_b5b")
    A(f"""s_barrier                       ; B5b
    s_and_b32 s30, s2, 31
    s_lshl_b32 s30, s30, 1
    s_lshr_b32 s31, s24, 2
    s_add_u32 s30, s30, s31
    s_lshl_b32 s30, s30, 5
    v_mov_b32 v5, s30
    ds_read_b128 v[40:43], v5 offset:{HN}
    ds_read_b128 v[44:47], v5 offset:{HN+16}""")
    for i in range(7):
        A(f"v_lshlrev_b32 v{W1R+i}, 16, v{W1R+i}")
        A(f"v_lshlrev_b32 v{B1R+i}, 16, v{B1R+i}")
        A(f"v_lshlrev_b32 v{W2R+i}, 16, v{W2R+i}")
    A("s_waitcnt lgkmcnt(0)")
    stamp(A, 13)
    c1 = -2 * 0.7978845608028654 * 1.4426950408889634
    c3 = c1 * 0.044715
    A(f"""v_mov_b32 v56, {f32hex(c1)}
    v_mov_b32 v57, {f32hex(c1)}
    v_mov_b32 v58, {f32hex(c3)}
    v_mov_b32 v59, {f32hex(c3)}
    v_mov_b32 v60, 1.0
    v_mov_b32 v61, 1.0""")
    MA = 96

    def bc(r):
        return (f"v[{r & ~1}:{(r & ~1)+1}]", r & 1)
    k = 0
    for i in range(7):
        w1, s1 = bc(W1R + i)
        b1, s2 = bc(B1R + i)
        w2, s3 = bc(W2R + i)
        for ep in range(4):
            u = 8 + 6 * (k % 2)
            z = u + 2
            y = u + 4
            k += 1
            A(f"""v_pk_fma_f32 v[{u}:{u+1}], v[{40+2*ep}:{41+2*ep}], {w1}, {b1} op_sel:[0,{s1},{s2}] op_sel_hi:[1,{s1},{s2}]
            v_pk_mul_f32 v[{z}:{z+1}], v[{u}:{u+1}], v[{u}:{u+1}]
            v_pk_fma_f32 v[{z}:{z+1}], v[{z}:{z+1}], v[58:59], v[56:57]
            v_pk_mul_f32 v[{z}:{z+1}], v[{z}:{z+1}], v[{u}:{u+1}]
            v_pk_mul_f32 v[{y}:{y+1}], v[{u}:{u+1}], {w2} op_sel:[0,{s3}] op_sel_hi:[1,{s3}]
            v_exp_f32 v{z}, v{z}
            v_exp_f32 v{z+1}, v{z+1}
            s_nop 0
            v_pk_add_f32 v[{z}:{z+1}], v[{z}:{z+1}], v[60:61]
            v_rcp_f32 v{z}, v{z}
            v_rcp_f32 v{z+1}, v{z+1}
            s_nop 0""")
            if i == 0:
                A(f"v_pk_mul_f32 v[{MA+2*ep}:{MA+2*ep+1}], v[{y}:{y+1}], v[{z}:{z+1}]")
            else:
                A(f"v_pk_fma_f32 v[{MA+2*ep}:{MA+2*ep+1}], v[{y}:{y+1}], v[{z}:{z+1}], v[{MA+2*ep}:{MA+2*ep+1}]")
    stamp(A, 14)
    A("s_nop 1")
    for ctl in ["quad_perm:[1,0,3,2]", "quad_perm:[2,3,0,1]", "row_half_mirror", "row_mirror"]:
        for e in range(8):
            A(f"v_add_f32_dpp v{MA+e}, v{MA+e}, v{MA+e} {ctl} row_mask:0xf bank_mask:0xf")
    A(f"""v_lshrrev_b32 v8, 4, v0
    v_lshlrev_b32 v8, 5, v8
    v_cmp_eq_u32 vcc, 0, v4
    s_and_saveexec_b64 s[34:35], vcc""")
    for k in range(2):
        A(f"ds_write_b128 v8, {vr(MA+4*k,4)} offset:{RS+16*k}")
    A(f"""s_mov_b64 exec, s[34:35]
    s_waitcnt lgkmcnt(0)
    s_barrier                       ; B6""")
    stamp(A, 11)
    if STAMPS:
        A(f"""s_lshl_b32 s30, s2, 9
        s_lshl_b32 s31, s24, 6
        s_add_u32 s30, s30, s31
        s_add_u32 s30, s30, {WS_ST}
        v_lshlrev_b32 v8, 2, v2
        v_cmp_gt_u32 vcc, 16, v2
        s_and_saveexec_b64 s[34:35], vcc
        buffer_store_dword v{STV}, v8, s[20:23], s30 offen
        s_mov_b64 exec, s[34:35]""")
    A(f"""v_cmp_gt_u32 vcc, 16, v0
    s_and_saveexec_b64 s[34:35], vcc
    s_cbranch_execz L_done
    v_lshrrev_b32 v8, 3, v0
    v_lshlrev_b32 v8, 9, v8
    v_and_b32 v9, 7, v0
    v_lshl_add_u32 v8, v9, 2, v8""")
    for k in range(16):
        A(f"ds_read_b32 v{16+k}, v8 offset:{RS+32*k}")
    A(f"""s_and_b32 s30, s2, 31
    s_lshl_b32 s30, s30, 6
    v_lshlrev_b32 v9, 2, v0
    v_add_u32 v9, s30, v9
    ds_read_b32 v10, v9 offset:{HB}
    s_waitcnt lgkmcnt(0)""")
    for k in range(1, 16):
        A(f"v_add_f32 v16, v16, v{16+k}")
    bf16r1(A, 16)
    A(f"""v_lshlrev_b32 v{B2R}, 16, v{B2R}
    v_add_f32 v16, v16, v{B2R}""")
    bf16r1(A, 16)
    A(f"""v_add_f32 v16, v16, v10
    v_cvt_pk_bf16_f32 v16, v16, v16
    v_lshlrev_b32 v8, 1, v0
    s_lshr_b32 s30, s30, 1
    s_lshl_b32 s31, s26, 10
    s_add_u32 s30, s30, s31
    buffer_store_short v16, v8, s[72:75], s30 offen""")
    A.label("L_done")
    A("s_endpgm")
    return name, kdesc(name, 256)


def main():
    global STAMPS
    out = sys.argv[1] if len(sys.argv) > 1 else f"cdna_kernels/{NAME}.s"
    for a in sys.argv[2:]:
        if a == "stamps":
            STAMPS = True
        elif "=" in a:
            k, v = a.split("=")
            OPT[k] = v
    A = Asm()
    n, d = k_fused(A)
    txt = HEADER + f"; @launch grid=(256,1,1) block=(512,1,1) lds={LDS_BYTES}\n"
    txt += '.amdgcn_target "amdgcn-amd-amdhsa--gfx950"\n.text\n'
    txt += A.text()
    txt += '.section .rodata,"a"\n.p2align 6\n' + d
    open(out, "w").write(txt)
    print(LDS_BYTES)


if __name__ == "__main__":
    main()
```
